```python
import torch

def _softmax(x, axis=-1):
    return torch.softmax(x, dim=axis)
def _gelu(x):
    return torch.nn.functional.gelu(x, approximate="tanh")
def _silu(x):
    return torch.nn.functional.silu(x)
def _sigmoid(x):
    return torch.sigmoid(x)
def _layernorm(x, axis=-1, eps=1e-5):
    m = x.mean(dim=axis, keepdim=True)
    v = x.var(dim=axis, keepdim=True, unbiased=False)
    return (x - m) / torch.sqrt(v + eps)
def _scatter_add(tgt, idx, src, axis=0):
    return tgt.clone().index_add_(axis, idx, src)
def _segment_sum(src, seg, n):
    out = torch.zeros((n,) + src.shape[1:], dtype=src.dtype)
    return out.index_add_(0, seg, src)
def _pad(x, pw):
    flat = tuple(v for pair in reversed(pw) for v in pair)
    return torch.nn.functional.pad(x, flat)

kernel_name = 'sequential_preLN__softmax_full_mha__mixer_token_mlp__prompt'

def setup_inputs():

    _w = (lambda a: (lambda t: t.to(torch.bfloat16) if t.is_floating_point() else t)(torch.as_tensor(a)))
    def _A_setup():
        B, S, D = 1, 2048, 512
        return {
            "x": _w((lambda *s: torch.randn(*s, dtype=torch.bfloat16) * 0.05)(B, S, D)),
            "wqkv": _w((lambda *s: torch.randn(*s, dtype=torch.bfloat16) * 0.05)(D, 3 * D)),
            "wo": _w((lambda *s: torch.randn(*s, dtype=torch.bfloat16) * 0.05)(D, D)),
        }
    _A_in = _A_setup()

    def _B_setup():
        B, S, D, F = 1, 2048, 512, 1792
        return {
            "x": _w((lambda *s: torch.randn(*s, dtype=torch.bfloat16) * 0.05)(B, S, D)),
            "w1": _w((lambda *s: torch.randn(*s, dtype=torch.bfloat16) * 0.8)(S, F) * (S ** -0.5)),
            "b1": _w((lambda *s: torch.randn(*s, dtype=torch.bfloat16) * 12.8)(F) * 0.02),
            "w2": _w((lambda *s: torch.randn(*s, dtype=torch.bfloat16) * 0.2)(F, S) * (F ** -0.5)),
            "b2": _w((lambda *s: torch.randn(*s, dtype=torch.bfloat16) * 3.2)(S) * 0.02),
        }
    _B_in = _B_setup()

    return {
        "A_x": _A_in["x"],
        "A_wqkv": _A_in["wqkv"],
        "A_wo": _A_in["wo"],
        "B_x": _B_in["x"],
        "B_w1": _B_in["w1"],
        "B_b1": _B_in["b1"],
        "B_w2": _B_in["w2"],
        "B_b2": _B_in["b2"],
    }

def reference(A_x, A_wqkv, A_wo, B_x, B_w1, B_b1, B_w2, B_b2):
    def _A_ref(x, wqkv, wo):
        B, S, D = x.shape
        H = 32; Dh = D // H
        qkv = (lambda x, *d: x.permute(*d))((x @ wqkv).reshape(B, S, 3, H, Dh), 2, 0, 3, 1, 4)
        q, k, v = qkv[0], qkv[1], qkv[2]
        scale = Dh ** -0.5
        scores = torch.einsum("bhqd,bhkd->bhqk", q, k) * scale
        p = _softmax(scores, axis=-1)
        o = torch.einsum("bhqk,bhkd->bhqd", p, v)
        return (lambda x, *d: x.permute(*d))(o, 0, 2, 1, 3).reshape(B, S, D) @ wo

    def _B_ref(x, w1, b1, w2, b2):
        B, S, D = x.shape
        h = _layernorm(x, axis=-1)
        u = torch.einsum("bsd,sf->bdf", h, w1) + b1
        u = _gelu(u)
        y = torch.einsum("bdf,fs->bds", u, w2) + b2
        return (lambda x, *d: x.permute(*d))(y, 0, 2, 1)

    x = A_x
    h = x + _A_ref(_layernorm(x, axis=-1), A_wqkv, A_wo)
    h2 = h + _B_ref(_layernorm(h, axis=-1), B_w1, B_b1, B_w2, B_b2)
    return h2
```

```python
import re

TRANS = ("v_exp_", "v_log_", "v_rcp_", "v_rsq_", "v_sqrt_", "v_sin_", "v_cos_")
REG = re.compile(r"(?<![\w.])([vas])(?:\[(\d+):(\d+)\]|(\d+))(?![\w])")


def regs_of(tok):
    out = []
    for m in REG.finditer(tok):
        k = m.group(1)
        if m.group(4) is not None:
            out.append((k, int(m.group(4))))
        else:
            out += [(k, i) for i in range(int(m.group(2)), int(m.group(3)) + 1)]
    t = tok.strip()
    if re.search(r"\bvcc\b", t):
        out.append(("s", "vcc"))
    if re.search(r"\bexec\b", t):
        out.append(("s", "exec"))
    if re.search(r"\bm0\b", t):
        out.append(("s", "m0"))
    return out


def split_ops(s):
    ops, depth, cur = [], 0, ""
    for ch in s:
        if ch in "[(":
            depth += 1
        if ch in "])":
            depth -= 1
        if ch == "," and depth == 0:
            ops.append(cur.strip())
            cur = ""
        else:
            cur += ch
    if cur.strip():
        ops.append(cur.strip())
    return ops


class Inst:
    def __init__(self, text, tag=None, needs=()):
        self.text = text
        self.tag = tag
        self.needs = tuple(needs)
        self.label = None
        self.pseudo = False
        self.w_vm = None
        self.w_lgkm = None
        self.nop = 0
        t = text.split(";")[0].strip()
        if t.endswith(":"):
            self.label = t[:-1]
            self.pseudo = True
            self.op = ""
            self.kind = "label"
            self.dst = self.src = ()
            return
        if t == "" or t.startswith("."):
            self.pseudo = True
            self.op = ""
            self.kind = "pseudo"
            self.dst = self.src = ()
            return
        parts = t.split(None, 1)
        op = self.op = parts[0]
        ops = split_ops(parts[1]) if len(parts) > 1 else []
        self.ops = ops
        R = [regs_of(o) for o in ops]
        allr = [r for x in R for r in x]
        dst, src = [], []
        self.srcA = self.srcB = self.srcC = ()
        self.passes = 0
        if op.startswith("v_mfma") or op.startswith("v_smfmac"):
            self.kind = "mfma"
            self.passes = 8 if "32x32" in op else 4
            dst = R[0]
            self.srcA, self.srcB = tuple(R[1]), tuple(R[2])
            if op.startswith("v_smfmac"):
                self.srcC = tuple(R[0])
                self.srcB = self.srcB + tuple(R[3])
            else:
                self.srcC = tuple(R[3])
            src = list(self.srcA + self.srcB + self.srcC)
        elif op.startswith("v_"):
            self.kind = "valu"
            if op.startswith("v_permlane") and "swap" in op:
                dst = R[0] + R[1]
                src = R[0] + R[1]
            elif op.startswith("v_cmpx"):
                dst = R[0] + [("s", "exec")]
                src = [r for x in R[1:] for r in x]
            elif op.startswith(("v_add_co", "v_sub_co", "v_addc_co", "v_subb_co", "v_div_scale", "v_mad_u64")):
                dst = R[0] + R[1]
                src = [r for x in R[2:] for r in x]
            elif op == "v_nop":
                pass
            else:
                dst = R[0]
                src = [r for x in R[1:] for r in x]
                if op.startswith(("v_fmac", "v_dot2c", "v_pk_fmac", "v_writelane")) or "dst_unused:UNUSED_PRESERVE" in t:
                    src = src + R[0]
                if "_dpp" in op or "row_" in t or "quad_perm" in t:
                    src = src + R[0]
        elif op.startswith(("buffer_", "global_")):
            self.kind = "vmem"
            lds = re.search(r"\blds\b", t) or "load_lds" in op
            if op.startswith(("buffer_inv", "buffer_wbl2")):
                pass
            elif "load" in op and not lds:
                dst = R[0]
                src = [r for x in R[1:] for r in x]
            elif "atomic" in op and re.search(r"\bsc0\b", t):
                dst = R[0]
                src = allr
            else:
                src = allr
                if lds:
                    src = src + [("s", "m0")]
            self.lds_dma = bool(lds)
            self.wide_store = ("store" in op) and op.endswith(("x3", "x4"))
            if self.wide_store:
                self.store_data = tuple(R[0] if op.startswith("buffer_") else R[1])
        elif op.startswith("ds_"):
            self.kind = "ds"
            if op.startswith(("ds_read", "ds_bpermute", "ds_permute", "ds_swizzle")) or "_rtn" in op:
                dst = R[0]
                src = [r for x in R[1:] for r in x]
            else:
                src = allr
        elif op.startswith(("s_load", "s_buffer_load", "s_memtime", "s_memrealtime")):
            self.kind = "smem"
            dst = R[0]
            src = [r for x in R[1:] for r in x]
        elif op.startswith("s_"):
            self.kind = "salu"
            if op.startswith(("s_cmp", "s_bitcmp", "s_cbranch", "s_branch", "s_waitcnt", "s_nop", "s_barrier", "s_endpgm",
                              "s_setprio", "s_sleep", "s_setpc", "s_setreg")):
                src = allr
                if op.startswith("s_cbranch_vcc"):
                    src = src + [("s", "vcc")]
                if op.startswith("s_cbranch_exec"):
                    src = src + [("s", "exec")]
            else:
                dst = R[0]
                src = [r for x in R[1:] for r in x]
                if "saveexec" in op:
                    dst = dst + [("s", "exec")]
                    src = src + [("s", "exec")]
                if op.startswith(("s_addk", "s_mulk", "s_cmov", "s_bitset")):
                    src = src + R[0]
        else:
            raise ValueError("unknown instruction: " + text)
        self.dst, self.src = tuple(dst), tuple(src)
        self.trans = op.startswith(TRANS)
        self.dot = op.startswith("v_dot")
        self.dpp = self.kind == "valu" and ("_dpp" in op or "row_" in t or "quad_perm" in t)


XDL_VALU = {4: 8, 8: 12}
XDL_OVERLAP = {4: 6, 8: 10}
XDL_WAR = {4: 3, 8: 7}
HIST = 14


def need_states(p, c):
    n = 0
    pd = set(p.dst)
    cs, cd = set(c.src), set(c.dst)
    if p.kind == "valu":
        vd = {r for r in pd if r[0] in "va"}
        sd = {r for r in pd if r[0] == "s"}
        if c.kind == "mfma" and vd & cs:
            n = max(n, 3 if p.dot else 2)
        if c.kind == "mfma" and ("s", "exec") in sd:
            n = max(n, 4)
        if c.kind == "valu":
            if p.trans and not c.trans and vd & cs:
                n = max(n, 1)
            if c.op.startswith(("v_readlane", "v_readfirstlane")) and vd & cs:
                n = max(n, 1)
            if c.op.startswith("v_permlane") and vd & cs:
                n = max(n, 2)
            if c.dpp and vd & cs:
                n = max(n, 2)
            if c.dpp and ("s", "exec") in sd:
                n = max(n, 5)
            if sd & cs:
                n = max(n, 4 if c.op.startswith(("v_readlane", "v_writelane", "v_div_fmas")) else 2)
            if ("s", "exec") in sd and c.op.startswith(("v_readlane", "v_readfirstlane", "v_writelane", "v_permlane")):
                n = max(n, 4)
            if ("sdwa" in p.op or "op_sel" in p.text and not p.op.startswith("v_pk_")) and vd & (cs | cd):
                n = max(n, 1)
        if p.dot and (vd & (cs | cd)):
            if not (c.op == p.op and not (vd & set(r for o in c.ops[1:3] for r in regs_of(o)))):
                n = max(n, 3)
        if c.kind == "vmem" and sd & cs:
            n = max(n, 5)
        if c.kind in ("salu", "smem") and sd & cs:
            n = max(n, 5 if c.op.startswith(("s_cbranch_vcc", "s_cbranch_exec")) else 1)
    elif p.kind == "mfma":
        if c.kind == "mfma":
            if pd & set(c.srcA + c.srcB):
                n = max(n, XDL_VALU[p.passes])
            if pd & set(c.srcC):
                if not (tuple(p.dst) == tuple(c.srcC) and p.passes == c.passes):
                    n = max(n, XDL_OVERLAP[p.passes])
            elif pd & cd:
                n = max(n, XDL_OVERLAP[p.passes])
        elif c.kind in ("valu", "vmem", "ds"):
            if pd & (cs | cd):
                n = max(n, XDL_VALU[p.passes])
            if c.kind == "valu" and set(p.srcC) & cd:
                n = max(n, XDL_WAR[p.passes])
    elif p.kind == "salu":
        if ("s", "m0") in pd and c.kind == "vmem" and c.lds_dma:
            n = max(n, 1)
    elif p.kind == "vmem":
        if p.wide_store and set(p.store_data) & cd:
            n = max(n, 2 if c.kind == "valu" else 1)
    return n


class Asm:
    uid = 0

    def __init__(self):
        self.ins = []

    def __call__(self, text, tag=None, needs=()):
        lines = [l.strip() for l in text.strip().split("\n")]
        for l in lines:
            if l == "" or l.startswith(";"):
                continue
            self.ins.append(Inst(l, tag, needs))

    def wait(self, *tags):
        i = Inst("", None, tags)
        i.kind = "waitpt"
        self.ins.append(i)

    def label(self, base):
        Asm.uid += 1
        return f"{base}_{Asm.uid}"

    def _explore(self):
        ins = self.ins
        lab = {x.label: i for i, x in enumerate(ins) if x.label}
        changed = False
        seen = set()
        stack = [(0, (), (), ())]
        steps = 0
        while stack:
            pc, vm, lg, hist = stack.pop()
            while pc < len(ins):
                x = ins[pc]
                steps += 1
                if steps > 3_000_000:
                    raise RuntimeError("path explosion")
                if x.kind == "label":
                    key = (pc, vm, lg, hist)
                    if key in seen:
                        break
                    seen.add(key)
                    pc += 1
                    continue
                if x.kind == "pseudo":
                    pc += 1
                    continue
                touch = set(x.src) | set(("tag", t) for t in x.needs)
                wr = set(x.dst)
                nv = None
                for k, e in enumerate(vm):
                    hit = e & touch or (e & wr and x.kind != "vmem")
                    if hit:
                        nv = len(vm) - 1 - k
                nl = None
                smem_pending = any(("smem", 0) in e for e in lg)
                for k, e in enumerate(lg):
                    hit = e & touch or (e & wr and not (x.kind == "ds" and not smem_pending))
                    if hit:
                        nl = 0 if smem_pending else len(lg) - 1 - k
                if nv is not None:
                    nv = min(nv, 62)
                    if x.w_vm is None or nv < x.w_vm:
                        x.w_vm = nv
                        changed = True
                if nl is not None:
                    nl = min(nl, 14)
                    if x.w_lgkm is None or nl < x.w_lgkm:
                        x.w_lgkm = nl
                        changed = True
                extra = 0
                if x.w_vm is not None or x.w_lgkm is not None:
                    extra = 1
                    if x.w_vm is not None:
                        vm = vm[max(0, len(vm) - x.w_vm):]
                    if x.w_lgkm is not None:
                        if x.w_lgkm == 0 or not smem_pending:
                            lg = lg[max(0, len(lg) - x.w_lgkm):]
                if x.kind == "waitpt":
                    if extra:
                        hist = tuple((a + 1, i) for a, i in hist if a + 1 < HIST)
                    pc += 1
                    continue
                need = 0
                for age, idx in hist:
                    n = need_states(ins[idx], x)
                    if n > age + extra:
                        need = max(need, n - age - extra)
                if need > x.nop:
                    x.nop = need
                    changed = True
                adv = extra + x.nop + 1
                if x.op == "s_nop":
                    adv += int(x.ops[0], 0)
                hist = tuple((a + adv, i) for a, i in hist if a + adv < HIST)
                if x.kind in ("valu", "mfma") or (x.kind == "salu" and ("s", "m0") in x.dst) or (x.kind == "vmem" and x.wide_store):
                    hist = hist + ((0, pc),)
                if x.op == "s_waitcnt":
                    m = re.search(r"vmcnt\((\d+)\)", x.text)
                    if m:
                        vm = vm[max(0, len(vm) - int(m.group(1))):]
                    m = re.search(r"lgkmcnt\((\d+)\)", x.text)
                    if m:
                        n = int(m.group(1))
                        if n == 0 or not smem_pending:
                            lg = lg[max(0, len(lg) - n):]
                tg = {("tag", x.tag)} if x.tag else set()
                if x.kind == "vmem":
                    vm = vm + (frozenset(set(x.dst) | tg),)
                    if len(vm) > 63:
                        vm = vm[-64:]
                elif x.kind == "ds":
                    lg = lg + (frozenset(set(x.dst) | tg),)
                elif x.kind == "smem":
                    lg = lg + (frozenset(set(x.dst) | tg | {("smem", 0)}),)
                while vm and not vm[0]:
                    vm = vm[1:]
                while lg and not lg[0]:
                    lg = lg[1:]
                if x.op == "s_endpgm":
                    break
                if x.op == "s_branch":
                    pc = lab[x.ops[0]]
                    continue
                if x.op.startswith("s_cbranch"):
                    stack.append((lab[x.ops[0]], vm, lg, hist))
                pc += 1
        return changed

    def finalize(self):
        for _ in range(50):
            if not self._explore():
                break
        else:
            raise RuntimeError("no fixpoint")
        out = []
        for x in self.ins:
            w = []
            if x.w_vm is not None:
                w.append(f"vmcnt({x.w_vm})")
            if x.w_lgkm is not None:
                w.append(f"lgkmcnt({x.w_lgkm})")
            if w:
                out.append("    s_waitcnt " + " ".join(w))
            n = x.nop
            while n > 0:
                k = min(n, 16)
                out.append(f"    s_nop {k - 1}")
                n -= k
            if x.kind == "waitpt":
                continue
            out.append(x.text if x.label else "    " + x.text)
        return "\n".join(out)

    def max_regs(self):
        mx = {"v": -1, "a": -1, "s": -1}
        for x in self.ins:
            for k, i in tuple(x.dst) + tuple(x.src):
                if isinstance(i, int):
                    mx[k] = max(mx[k], i)
        return mx


def kernel_text(name, a):
    return f""".globl {name}
.p2align 8
.type {name},@function
{name}:
{a.finalize()}
"""


def kernel_desc(name, a, min_vgpr=0):
    mx = a.max_regs()
    nv = max(mx["v"] + 1, 4)
    acc = (nv + 3) // 4 * 4
    tot = acc + mx["a"] + 1 if mx["a"] >= 0 else nv
    tot = max(tot, min_vgpr)
    assert acc <= 256 and tot <= 512, (name, mx)
    return f""".p2align 6
.amdhsa_kernel {name}
  .amdhsa_next_free_vgpr {tot}
  .amdhsa_next_free_sgpr {max(mx['s'] + 1, 16)}
  .amdhsa_accum_offset {acc}
  .amdhsa_group_segment_fixed_size 0
  .amdhsa_kernarg_size 88
  .amdhsa_user_sgpr_count 2
  .amdhsa_user_sgpr_kernarg_segment_ptr 1
  .amdhsa_system_sgpr_workgroup_id_x 1
.end_amdhsa_kernel
"""
```

```python
from asmlib import Asm, kernel_text, kernel_desc

S, D, H, F = 2048, 512, 32, 1792
MB = 1 << 20
WS_Q = 0 * MB
WS_K = 2 * MB
WS_V = 4 * MB
WS_O = 6 * MB
WS_H = 8 * MB
WS_Z = 10 * MB
WS_G = 12 * MB
WS_ST = 14 * MB
WS_FL = 14 * MB + 512 * 1024
WS_STAMP = 15 * MB
WS_BYTES = 16 * MB

ARG = dict(x=0, wqkv=8, wo=16, bx=24, w1=32, b1=40, w2=48, b2=56, out=64, dbg=72, ws=80)
NBYTES = dict(x=S * D * 2, wqkv=D * 3 * D * 2, wo=D * D * 2, w1=S * F * 2, b1=F * 2, w2=F * S * 2, b2=S * 2,
              out=S * D * 2, dbg=256, ws=WS_BYTES)

LOG2E = 1.4426950408889634
EPS = 1e-5


def f32(x):
    import struct
    return "0x%08x" % struct.unpack("<I", struct.pack("<f", x))[0]


def load_srds(a, names_regs):
    for n, r in names_regs:
        a(f"s_load_dwordx2 s[{r}:{r+1}], s[0:1], {ARG[n]}")
    for n, r in names_regs:
        a(f"s_mov_b32 s{r+2}, {NBYTES[n]}")
        a(f"s_mov_b32 s{r+3}, 0x00020000")


def vr(b, n):
    return f"v[{b}:{b+n-1}]" if n > 1 else f"v{b}"


def ar(b, n):
    return f"a[{b}:{b+n-1}]" if n > 1 else f"a{b}"


class Stamps:
    def __init__(self, on, kidx, sbase, ws_srd):
        self.on, self.kidx, self.sbase, self.ws = on, kidx, sbase, ws_srd
        self.n = 0

    def mark(self, a):
        if not self.on:
            return
        r = self.sbase + 2 * self.n
        a(f"s_memrealtime s[{r}:{r+1}]")
        self.n += 1

    def flush(self, a, vtmp, swave, stmp):
        if not self.on:
            return
        l = a.label("L_nostamp")
        a(f"s_cmp_lg_u32 s{swave}, 0")
        a(f"s_cbranch_scc1 {l}")
        a(f"s_lshl_b32 s{stmp}, s2, 6")
        a(f"s_add_u32 s{stmp}, s{stmp}, {WS_STAMP + self.kidx * 32768}")
        a(f"v_mov_b32 v{vtmp}, 0")
        for i in range(self.n):
            a(f"v_mov_b32 v{vtmp+1}, s{self.sbase + 2 * i}")
            a(f"buffer_store_dword v{vtmp+1}, v{vtmp}, s[{self.ws}:{self.ws+3}], s{stmp} offen offset:{4*i}")
        a(f"{l}:")
```

```python
from common import *

LDS = 131072 + 4096


def gen(stamp=False):
    a = Asm()
    X, W, WS = 4, 8, 12
    sw, stb, scg, stt, shp = 16, 17, 18, 19, 20
    sXa, sXb, sWa, sWb, sMx, sMw, sT, sT2, sONE = 21, 22, 23, 24, 25, 26, 27, 28, 30
    st = Stamps(stamp, 0, 40, WS)
    st.mark(a)
    a("s_cmp_ge_u32 s2, 256")
    a("s_cbranch_scc1 L_k1_end")
    load_srds(a, [("x", X), ("wqkv", W), ("ws", WS)])
    a(f"""
    v_lshrrev_b32 v2, 6, v0
    v_and_b32 v1, 63, v0
    v_readfirstlane_b32 s{sw}, v2
    s_and_b32 s{sT}, s2, 7
    s_lshr_b32 s{sT2}, s2, 3
    s_lshr_b32 s{stb}, s{sT}, 1
    s_lshl_b32 s{stb}, s{stb}, 3
    s_and_b32 s{scg}, s{sT2}, 7
    s_add_u32 s{stb}, s{stb}, s{scg}
    s_and_b32 s{scg}, s{sT}, 1
    s_lshl_b32 s{scg}, s{scg}, 2
    s_lshr_b32 s{sT2}, s{sT2}, 3
    s_add_u32 s{scg}, s{scg}, s{sT2}
    s_add_u32 s{sT}, s{stb}, s{scg}
    s_and_b32 s{sT}, s{sT}, 1
    s_lshl_b32 s{sXa}, s{sT}, 9
    s_xor_b32 s{sXb}, s{sXa}, 512
    s_mul_i32 s{sWa}, s{sXa}, 1536
    s_mul_i32 s{sWb}, s{sXb}, 1536
    s_lshl_b32 s{sMx}, s{sw}, 11
    s_mul_i32 s{sMw}, s{sw}, 6144
    s_add_u32 s{sMw}, s{sMw}, 8192
    """)
    a(f"""
    s_lshl_b32 s{sT}, s{stb}, 16
    s_lshl_b32 s{sT2}, s{sw}, 14
    s_add_u32 s{sT}, s{sT}, s{sT2}
    v_lshrrev_b32 v4, 3, v1
    v_lshlrev_b32 v4, 10, v4
    v_add_u32 v4, s{sT}, v4
    v_lshrrev_b32 v5, 4, v1
    v_and_b32 v6, 7, v1
    v_xor_b32 v5, v5, v6
    v_lshl_add_u32 v2, v5, 4, v4
    v_xor_b32 v5, 4, v5
    v_lshl_add_u32 v3, v5, 4, v4
    v_add_u32 v3, {8192 - 1024}, v3
    """)
    a(f"""
    s_mul_i32 s{sT}, s{sw}, {16 * 3072}
    s_lshl_b32 s{sT2}, s{scg}, 7
    s_add_u32 s{sT}, s{sT}, s{sT2}
    v_bfe_u32 v6, v1, 2, 3
    v_mul_u32_u24 v6, 3072, v6
    v_lshrrev_b32 v7, 5, v1
    v_lshl_add_u32 v6, v7, 6, v6
    v_and_b32 v7, 3, v1
    v_lshl_add_u32 v6, v7, 4, v6
    v_add_u32 v4, s{sT}, v6
    v_add_u32 v5, {8 * 3072}, v4
    """)

    def dma(c):
        slot = (c & 3) * 32768
        sx, sww = (sXa, sWa) if c < 4 else (sXb, sWb)
        t = f"c{c}"
        a(f"s_add_u32 m0, s{sMx}, {slot}")
        a(f"s_add_u32 s{sT}, s{sx}, {(c & 3) * 128}")
        a(f"buffer_load_dwordx4 v2, s[{X}:{X+3}], s{sT} offen lds", tag=t)
        a(f"buffer_load_dwordx4 v3, s[{X}:{X+3}], s{sT} offen offset:1024 lds", tag=t)
        a(f"s_add_u32 m0, s{sMw}, {slot}")
        a(f"s_add_u32 s{sT2}, s{sww}, {(c & 3) * 196608}")
        for seg in range(3):
            a(f"buffer_load_dwordx4 v4, s[{W}:{W+3}], s{sT2} offen offset:{seg*1024} lds", tag=t)
        a(f"s_add_u32 m0, s{sMw}, {slot + 3072}")
        for seg in range(3):
            a(f"buffer_load_dwordx4 v5, s[{W}:{W+3}], s{sT2} offen offset:{seg*1024} lds", tag=t)

    for c in range(4):
        dma(c)
    st.mark(a)
    a(f"""
    s_lshl_b32 s{sT}, s2, 10
    s_add_u32 s{sT}, s{sT}, {WS_ST}
    v_lshlrev_b32 v6, 2, v0
    v_mov_b32 v7, -1
    buffer_store_dword v7, v6, s[{WS}:{WS+3}], s{sT} offen
    """)
    a(f"""
    s_and_b32 s{stt}, s{sw}, 1
    s_lshr_b32 s{shp}, s{sw}, 1
    s_mov_b32 s{sONE}, 0x3f803f80
    s_lshl_b32 s{sT}, s{stt}, 12
    v_and_b32 v16, 31, v1
    v_lshrrev_b32 v17, 5, v1
    v_bfe_u32 v18, v1, 1, 3
    v_xor_b32 v18, v18, v17
    v_lshlrev_b32 v18, 4, v18
    v_lshl_add_u32 v18, v16, 7, v18
    v_add_u32 v6, s{sT}, v18
    v_xor_b32 v7, 32, v6
    v_xor_b32 v8, 64, v6
    v_xor_b32 v9, 96, v6
    v_add_u32 v10, 0x10000, v6
    v_add_u32 v11, 0x10000, v7
    v_add_u32 v12, 0x10000, v8
    v_add_u32 v13, 0x10000, v9
    s_lshl_b32 s{sT}, s{shp}, 9
    v_mul_u32_u24 v14, 3072, v17
    v_bfe_u32 v18, v1, 2, 2
    v_lshl_add_u32 v14, v18, 6, v14
    v_bfe_u32 v18, v1, 4, 1
    v_lshl_add_u32 v14, v18, 5, v14
    v_and_b32 v18, 3, v1
    v_lshl_add_u32 v14, v18, 3, v14
    v_add_u32 v14, s{sT}, v14
    v_add_u32 v15, 0x10000, v14
    """)
    SX, SXX, CS = 16, 17, 18
    FR = 24
    AQ, AK, AV = 56, 72, 88
    for r in (SX, SXX, CS, CS + 1, CS + 2):
        a(f"v_mov_b32 v{r}, 0")

    def reads(n):
        c, j = n >> 2, n & 3
        slot = c & 3
        hi, so = slot >> 1, (slot & 1) * 32768
        b = FR + 16 * (n & 1)
        a(f"ds_read_b128 {vr(b,4)}, v{6 + j + 4*hi} offset:{so}", tag=f"r{n}")
        for seg in range(3):
            for e in range(2):
                a(f"ds_read_b64_tr_b16 {vr(b + 4 + 4*seg + 2*e, 2)}, v{14 + hi} offset:{so + 8192 + j*6144 + seg*1024 + e*256}", tag=f"r{n}")

    def compute(n):
        b = FR + 16 * (n & 1)
        xf = vr(b, 4)
        def c(acc):
            return "0" if n == 0 else vr(acc, 16)
        dots = []
        for i in range(4):
            dots.append(f"v_dot2c_f32_bf16 v{SX}, s{sONE}, v{b+i}")
            dots.append(f"v_dot2c_f32_bf16 v{CS}, s{sONE}, v{b+4+i}")
            dots.append(f"v_dot2c_f32_bf16 v{SXX}, v{b+i}, v{b+i}")
            dots.append(f"v_dot2c_f32_bf16 v{CS+1}, s{sONE}, v{b+8+i}")
            dots.append(f"v_dot2c_f32_bf16 v{CS+2}, s{sONE}, v{b+12+i}")
        a(f"v_mfma_f32_32x32x16_bf16 {vr(AQ,16)}, {vr(b+4,4)}, {xf}, {c(AQ)}")
        for d in dots[:6]:
            a(d)
        a(f"v_mfma_f32_32x32x16_bf16 {vr(AK,16)}, {vr(b+8,4)}, {xf}, {c(AK)}")
        for d in dots[6:13]:
            a(d)
        a(f"v_mfma_f32_32x32x16_bf16 {vr(AV,16)}, {xf}, {vr(b+12,4)}, {c(AV)}")
        for d in dots[13:]:
            a(d)

    for n in range(32):
        c, j = n >> 2, n & 3
        if j == 0:
            a.wait(f"c{c}", f"r{n-1}")
            a("s_barrier")
            if c == 0:
                st.mark(a)
            reads(n)
            if 1 <= c <= 4:
                dma(c + 3)
        else:
            reads(n)
        if n > 0:
            compute(n - 1)
    compute(31)
    st.mark(a)

    T = 24
    for r in (SX, SXX, CS, CS + 1, CS + 2):
        a(f"v_mov_b32 v{T + r - SX}, v{r}")
    for r in (SX, SXX, CS, CS + 1, CS + 2):
        a(f"v_permlane32_swap_b32 v{T + r - SX}, v{r}")
    for r in (SX, SXX, CS, CS + 1, CS + 2):
        a(f"v_add_f32 v{r}, v{r}, v{T + r - SX}")
    MU, RS, RQ = 22, 20, 24
    a(f"""
    s_lshl_b32 s{sT}, s{sw}, 10
    s_add_u32 s{sT}, s{sT}, 131072
    v_and_b32 v2, 31, v1
    v_lshl_add_u32 v3, v2, 2, s{sT}
    ds_write_b32 v3, v{CS} offset:0
    ds_write_b32 v3, v{CS+1} offset:128
    v_mov_b32 v26, v{CS+2}
    v_mul_f32 v{MU}, {f32(-1.0/D)}, v{SX}
    v_mul_f32 v{SXX}, {f32(1.0/D)}, v{SXX}
    v_fma_f32 v{SXX}, -v{MU}, v{MU}, v{SXX}
    v_max_f32 v{SXX}, 0, v{SXX}
    v_add_f32 v{SXX}, {f32(EPS)}, v{SXX}
    v_rsq_f32 v{RS}, v{SXX}
    ds_write_b32 v3, v{MU} offset:384
    v_lshrrev_b32 v4, 5, v1
    v_lshl_add_u32 v4, v4, 4, s{sT}
    ds_write_b32 v3, v{RS} offset:512
    v_mul_f32 v{RQ}, {f32(0.25*LOG2E)}, v{RS}
    """)
    B0, B1, B2, B3 = 104, 120, 136, 152
    for q in range(4):
        a(f"ds_read_b128 {vr(B0+4*q,4)}, v4 offset:{32*q}")
    for q in range(4):
        a(f"ds_read_b128 {vr(B1+4*q,4)}, v4 offset:{128 + 32*q}")
    for q in range(4):
        a(f"ds_read_b128 {vr(B2+4*q,4)}, v4 offset:{384 + 32*q}")
    for q in range(4):
        a(f"ds_read_b128 {vr(B3+4*q,4)}, v4 offset:{512 + 32*q}")
    a(f"""
    s_lshl_b32 s{sT}, s{scg}, 1
    s_add_u32 s{sT}, s{sT}, s{shp}
    s_lshl_b32 s{sT}, s{sT}, 17
    s_lshl_b32 s{sT2}, s{stb}, 1
    s_add_u32 s{sT2}, s{sT2}, s{stt}
    s_lshl_b32 s{sT2}, s{sT2}, 10
    s_add_u32 s{sT}, s{sT}, s{sT2}
    v_lshlrev_b32 v5, 4, v1
    v_and_b32 v6, 0x33, v1
    v_bfe_u32 v7, v1, 2, 1
    v_lshl_add_u32 v6, v7, 3, v6
    v_bfe_u32 v7, v1, 3, 1
    v_lshl_add_u32 v6, v7, 2, v6
    v_lshlrev_b32 v6, 4, v6
    v_and_b32 v7, 15, v1
    v_lshlrev_b32 v7, 4, v7
    v_lshrrev_b32 v8, 5, v1
    v_lshl_add_u32 v7, v8, 8, v7
    v_bfe_u32 v8, v1, 4, 1
    v_lshl_add_u32 v7, v8, 16, v7
    """)
    P = 28
    for (acc, bc, scale, base, addr) in ((AQ, B0, RQ, WS_Q, 5), (AK, B1, RS, WS_K, 6)):
        for i in range(8):
            a(f"v_pk_fma_f32 {vr(acc+2*i,2)}, {vr(bc+2*i,2)}, {vr(MU,2)}, {vr(acc+2*i,2)} op_sel_hi:[1,0,1]")
        for i in range(8):
            a(f"v_pk_mul_f32 {vr(acc+2*i,2)}, {vr(acc+2*i,2)}, {vr(scale,2)} op_sel_hi:[1,0]")
        for i in range(8):
            a(f"v_cvt_pk_bf16_f32 v{P+i}, v{acc+2*i}, v{acc+2*i+1}")
        a(f"s_add_u32 s{sT2}, s{sT}, {base}")
        a(f"buffer_store_dwordx4 {vr(P,4)}, v{addr}, s[{WS}:{WS+3}], s{sT2} offen")
        a(f"s_add_u32 s{sT2}, s{sT}, {base + 65536}")
        a(f"buffer_store_dwordx4 {vr(P+4,4)}, v{addr}, s[{WS}:{WS+3}], s{sT2} offen")
        P += 8
    for i in range(8):
        a(f"v_pk_fma_f32 {vr(AV+2*i,2)}, {vr(B2+2*i,2)}, v[26:27], {vr(AV+2*i,2)} op_sel_hi:[1,0,1]")
    for i in range(8):
        a(f"v_pk_mul_f32 {vr(AV+2*i,2)}, {vr(AV+2*i,2)}, {vr(B3+2*i,2)}")
    for i in range(8):
        a(f"v_cvt_pk_bf16_f32 v{P+i}, v{AV+2*i}, v{AV+2*i+1}")
    a(f"s_add_u32 s{sT2}, s{sT}, {WS_V}")
    a(f"buffer_store_dwordx4 {vr(P,4)}, v7, s[{WS}:{WS+3}], s{sT2} offen")
    a(f"buffer_store_dwordx4 {vr(P+4,4)}, v7, s[{WS}:{WS+3}], s{sT2} offen offset:512")
    if stamp:
        a("s_waitcnt vmcnt(0)")
        st.mark(a)
        st.flush(a, 2, sw, sT)
    a("L_k1_end:")
    a("s_endpgm")
    return a
```

```python
from common import *

VOFF = 65536
VSTR = 1040
LDS = VOFF + 64 * VSTR


def gen(stamp=False, prio_at=52):
    a = Asm()
    WS = 4
    sw, shead, sqt, sT, sT2, sK, sV, sPASS, sM = 16, 17, 18, 19, 20, 21, 22, 23, 24
    st = Stamps(stamp, 1, 40, WS)
    st.mark(a)
    a("s_cmp_ge_u32 s2, 256")
    a("s_cbranch_scc1 L_k2_end")
    load_srds(a, [("ws", WS)])
    QF, IDX = 4, 3
    a(f"""
    v_lshrrev_b32 v2, 6, v0
    v_and_b32 v1, 63, v0
    v_readfirstlane_b32 s{sw}, v2
    v_lshlrev_b32 v2, 4, v1
    s_and_b32 s{sT}, s2, 7
    s_lshr_b32 s{sT2}, s2, 3
    s_lshl_b32 s{shead}, s{sT}, 2
    s_and_b32 s{sT}, s{sT2}, 3
    s_add_u32 s{shead}, s{shead}, s{sT}
    s_lshr_b32 s{sqt}, s{sT2}, 2
    s_lshl_b32 s{sqt}, s{sqt}, 3
    s_add_u32 s{sqt}, s{sqt}, s{sw}
    s_lshl_b32 s{sK}, s{shead}, 16
    s_lshl_b32 s{sT}, s{sqt}, 10
    s_add_u32 s{sT}, s{sT}, s{sK}
    s_lshl_b32 s{sT2}, s{sw}, 10
    s_add_u32 s{sK}, s{sK}, s{sT2}
    s_add_u32 s{sV}, s{sK}, {WS_V}
    s_add_u32 s{sK}, s{sK}, {WS_K}
    s_mul_i32 s{sM}, s{sw}, {VSTR}
    buffer_load_dwordx4 {vr(QF,4)}, v2, s[{WS}:{WS+3}], s{sT} offen
    """)
    for c in range(8):
        a(f"s_add_u32 m0, s{sT2}, {c * 8192}")
        if c:
            a(f"s_add_u32 s{sK}, s{sK}, 8192")
        a(f"buffer_load_dwordx4 v2, s[{WS}:{WS+3}], s{sK} offen lds", tag=f"c{c}")
        a(f"s_add_u32 m0, s{sM}, {VOFF + c * 8 * VSTR}")
        if c:
            a(f"s_add_u32 s{sV}, s{sV}, 8192")
        a(f"buffer_load_dwordx4 v2, s[{WS}:{WS+3}], s{sV} offen lds", tag=f"c{c}")
    st.mark(a)
    AK, AV0, AV1 = 8, 9, 10
    a(f"""
    v_mov_b32 v12, 0x3f803f80
    v_mov_b32 v13, 0x3f803f80
    v_mov_b32 v14, 0x3f803f80
    v_mov_b32 v15, 0x3f803f80
    v_mul_u32_u24 v11, {VSTR}, v1
    v_add_u32 v11, {VOFF + 1024}, v11
    """)
    a("ds_write_b128 v11, v[12:15]", tag="ones")
    a(f"""
    v_and_b32 v11, 15, v1
    v_lshlrev_b32 v11, 4, v11
    v_lshrrev_b32 v12, 5, v1
    v_lshl_add_u32 v11, v12, 8, v11
    v_add_u32 v11, {VOFF}, v11
    v_add_u32 v12, 512, v11
    v_and_b32 v13, 16, v1
    v_cmp_eq_u32 vcc, 0, v13
    v_mov_b32 v13, {VOFF + 1024}
    v_cndmask_b32 v{AV0}, v13, v11, vcc
    v_cndmask_b32 v{AV1}, v13, v12, vcc
    v_mov_b32 v{IDX}, 0xdddd
    s_mov_b32 s{sPASS}, 0
    """)
    AV0b, AV1b = 11, 12
    a(f"v_add_u32 v{AV0b}, {32 * VSTR}, v{AV0}")
    a(f"v_add_u32 v{AV1b}, {32 * VSTR}, v{AV1}")
    KR = [16, 20]
    VA = [24, 28]
    VB = [32, 36]
    CM = 40
    OA = 56
    SB = [72, 88, 104]
    for i in range(16):
        a(f"v_mov_b32 v{CM+i}, 0")

    def rdK(t):
        a(f"ds_read_b128 {vr(KR[t&1],4)}, v2 offset:{t*1024}")

    def rdV(t, j):
        ad = (AV0, AV1)[j] if t < 32 else (AV0b, AV1b)[j]
        a(f"ds_read_b128 {vr((VA, VB)[j][t&1],4)}, v{ad} offset:{(t & 31) * VSTR}")

    def qk(t):
        a(f"v_mfma_f32_32x32x16_bf16 {vr(SB[t%3],16)}, {vr(KR[t&1],4)}, {vr(QF,4)}, {vr(CM,16)}")

    def pv(t, j):
        a(f"v_smfmac_f32_32x32x32_bf16 {vr(OA,16)}, {vr((VA, VB)[j][t&1],4)}, {vr(SB[t%3]+8*j,8)}, v{IDX}")

    a.wait("c0", "ones")
    a("s_barrier")
    a("s_setprio 1")
    st.mark(a)
    a("L_k2_pass:")
    for i in range(16):
        a(f"v_mov_b32 v{OA+i}, 0")
    rdK(0)
    rdK(1)
    rdV(0, 0)
    qk(0)
    NT = 64
    for t in range(NT):
        if t == 6:
            l = a.label("L_k2_nobar")
            a(f"s_cmp_lg_u32 s{sPASS}, 0")
            a(f"s_cbranch_scc1 {l}")
            a.wait(*[f"c{c}" for c in range(1, 8)])
            a("s_barrier")
            a(f"{l}:")
        if t == prio_at:
            a("s_setprio 0")
        s = SB[t % 3]
        for i in range(16):
            a(f"v_exp_f32 v{s+i}, v{s+i}")
            if i == 0 and t + 1 < NT:
                qk(t + 1)
                if t + 2 < NT:
                    rdK(t + 2)
            if i == 5:
                if t > 0:
                    pv(t - 1, 1)
                rdV(t, 1)
            if i == 10:
                pv(t, 0)
                if t + 1 < NT:
                    rdV(t + 1, 0)
    pv(NT - 1, 1)
    st.mark(a)
    T = 16
    a(f"""
    v_rcp_f32 v{T}, v{OA+8}
    v_add_f32 v{T+2}, |v{OA}|, |v{OA+1}|
    v_add_f32 v{T+3}, |v{OA+2}|, |v{OA+3}|
    v_add_f32 v{T+4}, |v{OA+4}|, |v{OA+5}|
    v_add_f32 v{T+5}, |v{OA+6}|, |v{OA+7}|
    v_add_f32 v{T+2}, v{T+2}, v{T+3}
    v_add_f32 v{T+4}, v{T+4}, v{T+5}
    v_add_f32 v{T+2}, v{T+2}, v{T+4}
    v_mov_b32 v{T+3}, {f32(2.0**-40)}
    v_mov_b32 v{T+4}, {f32(2.0**40)}
    v_mov_b32 v{T+5}, {f32(2.0**120)}
    v_cmp_nge_f32 s[26:27], v{OA+8}, v{T+3}
    v_cmp_nle_f32 s[28:29], v{OA+8}, v{T+4}
    v_cmp_nle_f32 vcc, v{T+2}, v{T+5}
    s_or_b64 s[26:27], s[26:27], s[28:29]
    s_or_b64 s[26:27], s[26:27], vcc
    s_cselect_b32 s{sT}, 1, 0
    s_cmp_gt_u32 s{sT}, s{sPASS}
    s_cbranch_scc1 L_k2_slow
    """)
    for i in range(4):
        a(f"v_pk_mul_f32 {vr(OA+2*i,2)}, {vr(OA+2*i,2)}, {vr(T,2)} op_sel_hi:[1,0]")
    for i in range(4):
        a(f"v_cvt_pk_bf16_f32 v{T+4+i}, v{OA+2*i}, v{OA+2*i+1}")
    a(f"""
    s_lshl_b32 s{sT}, s{sqt}, 15
    s_lshl_b32 s{sT2}, s{shead}, 10
    s_add_u32 s{sT}, s{sT}, s{sT2}
    s_add_u32 s{sT}, s{sT}, {WS_O}
    buffer_store_dwordx4 {vr(T+4,4)}, v2, s[{WS}:{WS+3}], s{sT} offen
    """)
    if stamp:
        a("s_waitcnt vmcnt(0)")
        st.mark(a)
        st.flush(a, 16, sw, sT)
    a("L_k2_end:")
    a("s_endpgm")
    a("L_k2_slow:")
    a(f"""
    s_mov_b32 s{sPASS}, 1
    s_mov_b32 s{sT}, 0
    v_mov_b32 v13, v2
    v_mov_b32 v14, 0xff800000
    L_k2_maxloop:
    ds_read_b128 {vr(KR[0],4)}, v13
    v_add_u32 v13, 1024, v13
    v_mfma_f32_32x32x16_bf16 {vr(SB[0],16)}, {vr(KR[0],4)}, {vr(QF,4)}, 0
    """)
    for i in range(8):
        a(f"v_max3_f32 v14, v{SB[0]+2*i}, v{SB[0]+2*i+1}, v14")
    a(f"""
    s_add_u32 s{sT}, s{sT}, 1
    s_cmp_lt_u32 s{sT}, 64
    s_cbranch_scc1 L_k2_maxloop
    v_mov_b32 v15, v14
    v_permlane32_swap_b32 v15, v14
    v_max_f32 v14, v14, v15
    """)
    for i in range(16):
        a(f"v_sub_f32 v{CM+i}, 0, v14")
    a("s_branch L_k2_pass")
    return a
```

```python
from common import *

L_O, L_W, L_X, L_T = 0, 65536, 131072, 139264
LDS = L_T + 4 * 2048


def gen(stamp=False):
    a = Asm()
    X, W, WS = 4, 8, 12
    sw, stb, sdb, stt, sdt, sT, sT2, sO, sWo, sMo, sMw, sST, sCNT = range(16, 29)
    st = Stamps(stamp, 2, 40, WS)
    st.mark(a)
    a("s_cmp_ge_u32 s2, 256")
    a("s_cbranch_scc1 L_k3_end")
    load_srds(a, [("x", X), ("wo", W), ("ws", WS)])
    a(f"""
    v_lshrrev_b32 v2, 6, v0
    v_and_b32 v1, 63, v0
    v_readfirstlane_b32 s{sw}, v2
    v_lshlrev_b32 v2, 4, v1
    s_and_b32 s{sT}, s2, 7
    s_lshr_b32 s{sT2}, s2, 3
    s_lshl_b32 s{stb}, s{sT}, 2
    s_lshr_b32 s{sT}, s{sT2}, 3
    s_add_u32 s{stb}, s{stb}, s{sT}
    s_and_b32 s{sdb}, s{sT2}, 7
    s_and_b32 s{stt}, s{sw}, 1
    s_lshr_b32 s{sdt}, s{sw}, 1
    """)
    a(f"""
    s_lshl_b32 s{sMo}, s{stt}, 15
    s_lshl_b32 s{sT}, s{sdt}, 12
    s_add_u32 s{sMo}, s{sMo}, s{sT}
    s_lshl_b32 s{sO}, s{stb}, 16
    s_add_u32 s{sO}, s{sO}, s{sMo}
    s_add_u32 s{sO}, s{sO}, {WS_O}
    s_lshl_b32 s{sMw}, s{sw}, 12
    s_lshl_b32 s{sWo}, s{sw}, 15
    s_lshl_b32 s{sT}, s{sdb}, 7
    s_add_u32 s{sWo}, s{sWo}, s{sT}
    v_bfe_u32 v3, v1, 2, 3
    v_lshlrev_b32 v3, 10, v3
    v_lshrrev_b32 v7, 5, v1
    v_lshl_add_u32 v3, v7, 6, v3
    v_and_b32 v7, 3, v1
    v_lshl_add_u32 v3, v7, 4, v3
    v_add_u32 v4, {7168}, v3
    v_add_u32 v5, {2*7168}, v3
    v_add_u32 v6, {3*7168}, v3
    """)
    for c in range(4):
        a(f"s_add_u32 m0, s{sMo}, {L_O + c * 8192}")
        if c:
            a(f"s_add_u32 s{sO}, s{sO}, 8192")
        for i in range(4):
            a(f"buffer_load_dwordx4 v2, s[{WS}:{WS+3}], s{sO} offen offset:{i*1024} lds", tag=f"c{c}")
        a(f"s_add_u32 m0, s{sMw}, {L_W + c * 16384}")
        if c:
            a(f"s_add_u32 s{sWo}, s{sWo}, 131072")
        for i in range(4):
            a(f"buffer_load_dwordx4 v{3+i}, s[{W}:{W+3}], s{sWo} offen offset:{i*1024} lds", tag=f"c{c}")
    a(f"""
    s_lshl_b32 s{sT}, s{stb}, 16
    s_lshl_b32 s{sT2}, s{sw}, 14
    s_add_u32 s{sT}, s{sT}, s{sT2}
    s_lshl_b32 s{sT2}, s{sdb}, 7
    s_add_u32 s{sT}, s{sT}, s{sT2}
    v_lshrrev_b32 v4, 3, v1
    v_lshlrev_b32 v4, 10, v4
    v_lshrrev_b32 v5, 4, v1
    v_and_b32 v6, 7, v1
    v_xor_b32 v5, v5, v6
    v_lshl_add_u32 v3, v5, 4, v4
    v_xor_b32 v5, 4, v5
    v_lshl_add_u32 v4, v5, 4, v4
    v_add_u32 v4, {8192 - 1024}, v4
    s_lshl_b32 s{sT2}, s{sw}, 11
    s_add_u32 m0, s{sT2}, {L_X}
    """)
    a(f"buffer_load_dwordx4 v3, s[{X}:{X+3}], s{sT} offen lds", tag="c3")
    a(f"buffer_load_dwordx4 v4, s[{X}:{X+3}], s{sT} offen offset:1024 lds", tag="c3")
    st.mark(a)
    a(f"""
    s_lshl_b32 s{sT}, s{stt}, 15
    v_add_u32 v3, s{sT}, v2
    s_lshl_b32 s{sT}, s{sdt}, 9
    s_add_u32 s{sT}, s{sT}, {L_W}
    v_lshrrev_b32 v7, 5, v1
    v_lshlrev_b32 v4, 8, v7
    v_bfe_u32 v8, v1, 2, 2
    v_lshl_add_u32 v4, v8, 6, v4
    v_bfe_u32 v8, v1, 4, 1
    v_lshlrev_b32 v9, 5, v8
    v_and_b32 v8, 1, v1
    v_lshl_add_u32 v9, v8, 4, v9
    v_bfe_u32 v8, v1, 1, 1
    v_lshl_add_u32 v9, v8, 3, v9
    v_add3_u32 v4, v4, v9, s{sT}
    s_lshl_b32 s{sT}, s{stt}, 12
    s_add_u32 s{sT}, s{sT}, {L_X}
    s_lshl_b32 s{sT2}, s{sdt}, 6
    v_and_b32 v10, 31, v1
    v_bfe_u32 v8, v1, 1, 3
    v_xor_b32 v8, v8, v7
    v_lshlrev_b32 v8, 4, v8
    v_xor_b32 v8, s{sT2}, v8
    v_lshl_add_u32 v8, v10, 7, v8
    v_add_u32 v5, s{sT}, v8
    v_xor_b32 v6, 32, v5
    """)
    FR, NB = 16, 4
    ACC = 48
    XF = 64

    def reads(n):
        b = FR + 8 * (n % NB)
        a(f"ds_read_b128 {vr(b,4)}, v3 offset:{n*1024}")
        a(f"ds_read_b64_tr_b16 {vr(b+4,2)}, v4 offset:{n*2048}")
        a(f"ds_read_b64_tr_b16 {vr(b+6,2)}, v4 offset:{n*2048 + 1024}")

    def mm(n):
        b = FR + 8 * (n % NB)
        a(f"v_mfma_f32_32x32x16_bf16 {vr(ACC,16)}, {vr(b+4,4)}, {vr(b,4)}, {'0' if n == 0 else vr(ACC,16)}")

    LAG = 3
    for n in range(32 + LAG):
        if n < 32:
            if n % 8 == 0:
                a.wait(f"c{n//8}")
                a("s_barrier")
                if n == 0:
                    st.mark(a)
            reads(n)
        if n == 32:
            a(f"ds_read_b128 {vr(XF,4)}, v5")
            a(f"ds_read_b128 {vr(XF+4,4)}, v6")
        if n >= LAG:
            mm(n - LAG)
    st.mark(a)
    HP, T = 72, 16
    for i in range(8):
        a(f"v_lshlrev_b32 v{T+2*i}, 16, v{XF+i}")
        a(f"v_and_b32 v{T+2*i+1}, 0xffff0000, v{XF+i}")
    for i in range(8):
        a(f"v_pk_add_f32 {vr(ACC+2*i,2)}, {vr(ACC+2*i,2)}, {vr(T+2*i,2)}")
    a(f"v_pk_add_f32 {vr(T,2)}, {vr(ACC,2)}, {vr(ACC+2,2)}")
    a(f"v_pk_add_f32 {vr(T+2,2)}, {vr(ACC+4,2)}, {vr(ACC+6,2)}")
    a(f"v_pk_add_f32 {vr(T+4,2)}, {vr(ACC+8,2)}, {vr(ACC+10,2)}")
    a(f"v_pk_add_f32 {vr(T+6,2)}, {vr(ACC+12,2)}, {vr(ACC+14,2)}")
    a(f"v_pk_add_f32 {vr(T,2)}, {vr(T,2)}, {vr(T+2,2)}")
    a(f"v_pk_add_f32 {vr(T+4,2)}, {vr(T+4,2)}, {vr(T+6,2)}")
    a(f"v_pk_add_f32 {vr(T,2)}, {vr(T,2)}, {vr(T+4,2)}")
    a(f"""
    v_add_f32 v{T}, v{T}, v{T+1}
    v_mov_b32 v{T+1}, v{T}
    v_permlane32_swap_b32 v{T+1}, v{T}
    v_add_f32 v{T}, v{T}, v{T+1}
    v_mul_f32 v{T}, {f32(1.0/32)}, v{T}
    """)
    for i in range(8):
        a(f"v_pk_add_f32 {vr(T+2+2*i,2)}, {vr(ACC+2*i,2)}, {vr(T,2)} op_sel_hi:[1,0] neg_lo:[0,1] neg_hi:[0,1]")
    a(f"v_pk_mul_f32 {vr(T+18,2)}, {vr(T+2,2)}, {vr(T+2,2)}")
    a(f"v_pk_mul_f32 {vr(T+20,2)}, {vr(T+4,2)}, {vr(T+4,2)}")
    for i in range(2, 8):
        r = T + 18 + 2 * (i & 1)
        a(f"v_pk_fma_f32 {vr(r,2)}, {vr(T+2+2*i,2)}, {vr(T+2+2*i,2)}, {vr(r,2)}")
    a(f"""
    v_pk_add_f32 {vr(T+18,2)}, {vr(T+18,2)}, {vr(T+20,2)}
    v_add_f32 v{T+1}, v{T+18}, v{T+19}
    v_mov_b32 v{T+2}, v{T+1}
    v_permlane32_swap_b32 v{T+2}, v{T+1}
    v_add_f32 v{T+1}, v{T+1}, v{T+2}
    s_lshl_b32 s{sST}, s{stb}, 1
    s_add_u32 s{sST}, s{sST}, s{stt}
    s_lshl_b32 s{sT2}, s{sdb}, 1
    s_add_u32 s{sT2}, s{sT2}, s{sdt}
    s_lshl_b32 s{sT}, s{sST}, 12
    s_add_u32 s{sT}, s{sT}, {WS_ST}
    s_lshl_b32 s{sCNT}, s{sT2}, 8
    s_add_u32 s{sCNT}, s{sCNT}, s{sT}
    v_lshlrev_b32 v11, 3, v10
    buffer_store_dwordx2 {vr(T,2)}, v11, s[{WS}:{WS+3}], s{sCNT} offen sc1
    v_lshlrev_b32 v11, 3, v1
    """)
    for i in range(8):
        a(f"v_cvt_pk_bf16_f32 v{HP+i}, v{ACC+2*i}, v{ACC+2*i+1}")
    a(f"""
    s_lshl_b32 s{sO}, s{sST}, 15
    s_lshl_b32 s{sWo}, s{sT2}, 11
    s_add_u32 s{sO}, s{sO}, s{sWo}
    s_add_u32 s{sO}, s{sO}, {WS_H}
    buffer_store_dwordx4 {vr(HP,4)}, v2, s[{WS}:{WS+3}], s{sO} offen
    buffer_store_dwordx4 {vr(HP+4,4)}, v2, s[{WS}:{WS+3}], s{sO} offen offset:1024
    s_mov_b32 s{sCNT}, 0
    L_k3_poll:
    """)
    P = 16
    for p in range(8):
        a(f"buffer_load_dwordx2 {vr(P+2*p,2)}, v11, s[{WS}:{WS+3}], s{sT} offen offset:{p*512} sc1")
    a(f"""
    v_max3_u32 v32, v{P}, v{P+1}, v{P+2}
    v_max3_u32 v33, v{P+3}, v{P+4}, v{P+5}
    v_max3_u32 v32, v{P+6}, v{P+7}, v32
    v_max3_u32 v33, v{P+8}, v{P+9}, v33
    v_max3_u32 v32, v{P+10}, v{P+11}, v32
    v_max3_u32 v33, v{P+12}, v{P+13}, v33
    v_max3_u32 v32, v{P+14}, v{P+15}, v32
    v_max_u32 v32, v32, v33
    v_cmp_eq_u32 vcc, -1, v32
    s_add_u32 s{sCNT}, s{sCNT}, 1
    s_cbranch_vccz L_k3_got
    s_cmp_lt_u32 s{sCNT}, 0x40000
    s_cbranch_scc1 L_k3_poll
    L_k3_got:
    """)
    st.mark(a)
    a(f"""
    v_pk_add_f32 {vr(32,2)}, {vr(P,2)}, {vr(P+2,2)}
    v_pk_add_f32 {vr(34,2)}, {vr(P+4,2)}, {vr(P+6,2)}
    v_pk_add_f32 {vr(36,2)}, {vr(P+8,2)}, {vr(P+10,2)}
    v_pk_add_f32 {vr(38,2)}, {vr(P+12,2)}, {vr(P+14,2)}
    v_pk_add_f32 {vr(32,2)}, {vr(32,2)}, {vr(34,2)}
    v_pk_add_f32 {vr(36,2)}, {vr(36,2)}, {vr(38,2)}
    v_pk_add_f32 {vr(32,2)}, {vr(32,2)}, {vr(36,2)}
    v_mov_b32 v34, v32
    v_permlane32_swap_b32 v34, v32
    v_add_f32 v32, v32, v34
    v_mul_f32 v32, {f32(1.0/16)}, v32
    """)
    for p in range(8):
        a(f"v_sub_f32 v{P+2*p}, v{P+2*p}, v32")
    a(f"v_mul_f32 v34, v{P}, v{P}")
    a(f"v_mul_f32 v35, v{P+2}, v{P+2}")
    for p in range(2, 8):
        a(f"v_fmac_f32 v{34 + (p & 1)}, v{P+2*p}, v{P+2*p}")
    a(f"""
    v_add_f32 v34, v34, v35
    v_fmac_f32 v33, {f32(32.0)}, v34
    v_mov_b32 v34, v33
    v_permlane32_swap_b32 v34, v33
    v_add_f32 v33, v33, v34
    v_mul_f32 v33, {f32(1.0/D)}, v33
    v_add_f32 v34, {f32(EPS)}, v33
    v_rcp_f32 v35, v34
    v_rsq_f32 v34, v34
    v_mul_f32 v35, v33, v35
    v_add_f32 v35, {f32(EPS)}, v35
    v_rsq_f32 v35, v35
    s_lshl_b32 s{sT}, s{sw}, 11
    s_add_u32 s{sT}, s{sT}, {L_T}
    v_mul_f32 v34, v34, v35
    """)
    for i in range(8):
        a(f"v_pk_add_f32 {vr(ACC+2*i,2)}, {vr(ACC+2*i,2)}, {vr(32,2)} op_sel_hi:[1,0] neg_lo:[0,1] neg_hi:[0,1]")
    for i in range(8):
        a(f"v_pk_mul_f32 {vr(ACC+2*i,2)}, {vr(ACC+2*i,2)}, {vr(34,2)} op_sel_hi:[1,0]")
    for i in range(8):
        a(f"v_cvt_pk_bf16_f32 v{P+i}, v{ACC+2*i}, v{ACC+2*i+1}")
    a(f"""
    v_lshlrev_b32 v12, 6, v10
    v_lshl_add_u32 v12, v7, 4, v12
    v_add_u32 v12, s{sT}, v12
    ds_write_b128 v12, {vr(P,4)}
    ds_write_b128 v12, {vr(P+4,4)} offset:32
    v_lshlrev_b32 v13, 9, v7
    v_bfe_u32 v8, v1, 2, 2
    v_lshl_add_u32 v13, v8, 6, v13
    v_add3_u32 v13, v13, v9, s{sT}
    ds_read_b64_tr_b16 {vr(P+8,2)}, v13
    ds_read_b64_tr_b16 {vr(P+10,2)}, v13 offset:256
    ds_read_b64_tr_b16 {vr(P+12,2)}, v13 offset:1024
    ds_read_b64_tr_b16 {vr(P+14,2)}, v13 offset:1280
    s_lshl_b32 s{sO}, s{sT2}, 17
    s_lshl_b32 s{sWo}, s{sST}, 11
    s_add_u32 s{sO}, s{sO}, s{sWo}
    s_add_u32 s{sO}, s{sO}, {WS_Z}
    buffer_store_dwordx4 {vr(P+8,4)}, v2, s[{WS}:{WS+3}], s{sO} offen
    buffer_store_dwordx4 {vr(P+12,4)}, v2, s[{WS}:{WS+3}], s{sO} offen offset:1024
    """)
    if stamp:
        a("s_waitcnt vmcnt(0)")
        st.mark(a)
        st.flush(a, 16, sw, sT)
    a("L_k3_end:")
    a("s_endpgm")
    return a
```

```python
from common import *

DEPTH = 8
RING = DEPTH * 2048
LDS = 65536


def gen(which, stamp=False):
    a = Asm()
    W, B, WS, OUT = 4, 8, 12, 28
    sw, sdb, snb, sT, sT2, sA, sW, sM = range(16, 24)
    name = f"k{3+which}"
    KS = 32 if which == 1 else 28
    WROW = F * 2 if which == 1 else S * 2
    ASTR = (128 if which == 1 else 112) * 1024
    ABASE = WS_Z if which == 1 else WS_G
    st = Stamps(stamp, 2 + which, 40, WS)
    st.mark(a)
    a("s_cmp_ge_u32 s2, 256")
    a(f"s_cbranch_scc1 L_{name}_end")
    a(f"""
    s_and_b32 s{sT}, s2, 7
    s_lshr_b32 s{sT2}, s2, 3
    s_lshr_b32 s{snb}, s{sT2}, 2
    """)
    if which == 1:
        a(f"s_cmp_ge_u32 s{snb}, 7")
        a(f"s_cbranch_scc1 L_{name}_end")
    srds = [("w1" if which == 1 else "w2", W), ("b1" if which == 1 else "b2", B), ("ws", WS)]
    if which == 2:
        srds.append(("out", OUT))
    load_srds(a, srds)
    a(f"""
    v_lshrrev_b32 v2, 6, v0
    v_and_b32 v1, 63, v0
    v_readfirstlane_b32 s{sw}, v2
    v_lshlrev_b32 v2, 4, v1
    s_and_b32 s{sdb}, s{sT}, 1
    s_lshl_b32 s{sdb}, s{sdb}, 2
    s_and_b32 s{sT2}, s{sT2}, 3
    s_add_u32 s{sdb}, s{sdb}, s{sT2}
    s_lshr_b32 s{sT}, s{sT}, 1
    s_mul_i32 s{sT}, s{sT}, {7 if which == 1 else 8}
    s_add_u32 s{snb}, s{snb}, s{sT}
    s_mul_i32 s{sA}, s{sdb}, {2 * ASTR}
    s_mul_i32 s{sT}, s{sw}, {KS * 1024}
    s_add_u32 s{sA}, s{sA}, s{sT}
    s_add_u32 s{sA}, s{sA}, {ABASE}
    s_mul_i32 s{sW}, s{sw}, {KS * 16 * WROW}
    s_lshl_b32 s{sT}, s{snb}, 7
    s_add_u32 s{sW}, s{sW}, s{sT}
    s_mul_i32 s{sM}, s{sw}, {RING}
    v_add_u32 v3, {ASTR}, v2
    v_bfe_u32 v4, v1, 2, 3
    v_mul_u32_u24 v4, {WROW}, v4
    v_lshrrev_b32 v7, 5, v1
    v_lshl_add_u32 v4, v7, 6, v4
    v_and_b32 v8, 3, v1
    v_lshl_add_u32 v4, v8, 4, v4
    v_add_u32 v5, {8 * WROW - 1024}, v4
    """)
    AF = 96
    WF = 16
    ACC = 32

    def issue(k):
        s = k % DEPTH
        a(f"s_add_u32 m0, s{sM}, {s * 2048}")
        if k:
            a(f"s_add_u32 s{sW}, s{sW}, {16 * WROW}")
        a(f"buffer_load_dwordx4 v4, s[{W}:{W+3}], s{sW} offen lds", tag=f"w{k}")
        a(f"buffer_load_dwordx4 v5, s[{W}:{W+3}], s{sW} offen offset:1024 lds", tag=f"w{k}")
        if k and k % 4 == 0:
            a(f"s_add_u32 s{sA}, s{sA}, 4096")
        a(f"buffer_load_dwordx4 {vr(AF + 8*s, 4)}, v2, s[{WS}:{WS+3}], s{sA} offen offset:{(k % 4) * 1024}")
        a(f"buffer_load_dwordx4 {vr(AF + 8*s + 4, 4)}, v3, s[{WS}:{WS+3}], s{sA} offen offset:{(k % 4) * 1024}")

    for k in range(DEPTH - 1):
        issue(k)
    st.mark(a)
    hs, es = (1024, 256) if which == 1 else (256, 1024)
    a(f"""
    v_mul_u32_u24 v6, {hs}, v7
    v_bfe_u32 v9, v1, 2, 2
    v_lshl_add_u32 v6, v9, 6, v6
    v_bfe_u32 v9, v1, 4, 1
    v_lshl_add_u32 v6, v9, 5, v6
    v_lshl_add_u32 v6, v8, 3, v6
    v_add_u32 v6, s{sM}, v6
    """)
    EP = 160
    a(f"""
    s_lshr_b32 s24, s{sw}, 1
    s_and_b32 s25, s{sw}, 1
    s_lshl_b32 s26, s{snb}, 1
    s_add_u32 s26, s26, s24
    s_lshl_b32 s27, s{sdb}, 1
    s_add_u32 s27, s27, s25
    """)

    def ep_loads():
        if which == 1:
            a(f"s_lshl_b32 s{sT}, s26, 6")
            a(f"v_lshlrev_b32 v10, 3, v7")
            for q in range(4):
                a(f"buffer_load_dwordx2 {vr(EP + 2*q, 2)}, v10, s[{B}:{B+3}], s{sT} offen offset:{16*q}")
        else:
            a(f"""
            s_lshl_b32 s{sT}, s26, 6
            v_and_b32 v10, 31, v1
            v_lshlrev_b32 v10, 1, v10
            buffer_load_ushort v{EP+8}, v10, s[{B}:{B+3}], s{sT} offen
            s_lshl_b32 s{sT}, s26, 15
            s_lshl_b32 s{sT2}, s27, 11
            s_add_u32 s{sT}, s{sT}, s{sT2}
            s_add_u32 s{sT}, s{sT}, {WS_H}
            buffer_load_dwordx4 {vr(EP,4)}, v2, s[{WS}:{WS+3}], s{sT} offen
            buffer_load_dwordx4 {vr(EP+4,4)}, v2, s[{WS}:{WS+3}], s{sT} offen offset:1024
            """)

    def reads(k):
        a.wait(f"w{k}")
        b = WF + 8 * (k & 1)
        so = (k % DEPTH) * 2048
        for nt in range(2):
            for e in range(2):
                a(f"ds_read_b64_tr_b16 {vr(b + 4*nt + 2*e, 2)}, v6 offset:{so + nt*512 + e*es}")

    def mm(k):
        b = WF + 8 * (k & 1)
        s = AF + 8 * (k % DEPTH)
        for nt in range(2):
            for dt in range(2):
                acc = vr(ACC + 16 * (2*nt + dt), 16)
                wf, af = vr(b + 4*nt, 4), vr(s + 4*dt, 4)
                A, Bq = (wf, af) if which == 1 else (af, wf)
                a(f"v_mfma_f32_32x32x16_bf16 {acc}, {A}, {Bq}, {'0' if k == 0 else acc}")

    reads(0)
    st.mark(a)
    for k in range(KS):
        if k + DEPTH - 1 < KS:
            issue(k + DEPTH - 1)
        elif k + DEPTH - 1 == KS:
            ep_loads()
        if k + 1 < KS:
            reads(k + 1)
        mm(k)
    st.mark(a)
    a("s_barrier")
    ends = a.label("L_red_done")
    labs = [a.label("L_red") for _ in range(4)]
    for w in range(1, 4):
        a(f"s_cmp_eq_u32 s{sw}, {w}")
        a(f"s_cbranch_scc1 {labs[w]}")
    FIN = 16
    for w in range(4):
        a(f"{labs[w]}:")
        for j in range(1, 4):
            t = (w + j) & 3
            for q in range(4):
                a(f"ds_write_b128 v2, {vr(ACC + 16*t + 4*q, 4)} offset:{(t*3 + j - 1) * 4096 + q * 1024}", tag="red")
        for i in range(8):
            a(f"v_pk_mul_f32 {vr(FIN + 2*i, 2)}, {vr(ACC + 16*w + 2*i, 2)}, 1.0 op_sel_hi:[1,0]")
        if w < 3:
            a(f"s_branch {ends}")
    a(f"{ends}:")
    a(f"s_mul_i32 s{sT}, s{sw}, 12288")
    a(f"v_add_u32 v9, s{sT}, v2")
    a.wait("red")
    a("s_barrier")
    for j in range(3):
        for q in range(4):
            a(f"ds_read_b128 {vr(ACC + 16*j + 4*q, 4)}, v9 offset:{j * 4096 + q * 1024}")
    T = 96
    if which == 1:
        for q in range(4):
            for e in range(2):
                a(f"v_lshlrev_b32 v{T + 4*q + 2*e}, 16, v{EP + 2*q + e}")
                a(f"v_and_b32 v{T + 4*q + 2*e + 1}, 0xffff0000, v{EP + 2*q + e}")
    else:
        a(f"v_lshlrev_b32 v{EP+8}, 16, v{EP+8}")
        for i in range(8):
            a(f"v_lshlrev_b32 v{T + 2*i}, 16, v{EP + i}")
            a(f"v_and_b32 v{T + 2*i + 1}, 0xffff0000, v{EP + i}")
        for i in range(8):
            a(f"v_pk_add_f32 {vr(T + 2*i, 2)}, {vr(T + 2*i, 2)}, {vr(EP+8, 2)} op_sel_hi:[1,0]")
    for i in range(8):
        a(f"v_pk_add_f32 {vr(FIN + 2*i, 2)}, {vr(FIN + 2*i, 2)}, {vr(T + 2*i, 2)}")
    for j in range(3):
        for i in range(8):
            a(f"v_pk_add_f32 {vr(FIN + 2*i, 2)}, {vr(FIN + 2*i, 2)}, {vr(ACC + 16*j + 2*i, 2)}")
    st.mark(a)
    if which == 1:
        c0 = -2.0 * 0.7978845608028654 * LOG2E
        a(f"v_mov_b32 v10, {f32(c0 * 0.044715)}")
        a(f"v_mov_b32 v12, {f32(c0)}")
        for i in range(8):
            a(f"v_pk_mul_f32 {vr(T + 2*i, 2)}, {vr(FIN + 2*i, 2)}, {vr(FIN + 2*i, 2)}")
        for i in range(8):
            a(f"v_pk_fma_f32 {vr(T + 2*i, 2)}, {vr(T + 2*i, 2)}, v[10:11], v[12:13] op_sel_hi:[1,0,0]")
        for i in range(8):
            a(f"v_pk_mul_f32 {vr(T + 2*i, 2)}, {vr(T + 2*i, 2)}, {vr(FIN + 2*i, 2)}")
        for i in range(16):
            a(f"v_exp_f32 v{T+i}, v{T+i}")
        for i in range(8):
            a(f"v_pk_add_f32 {vr(T + 2*i, 2)}, {vr(T + 2*i, 2)}, 1.0 op_sel_hi:[1,0]")
        for i in range(16):
            a(f"v_rcp_f32 v{T+i}, v{T+i}")
        for i in range(8):
            a(f"v_pk_mul_f32 {vr(FIN + 2*i, 2)}, {vr(FIN + 2*i, 2)}, {vr(T + 2*i, 2)}")
        for i in range(8):
            a(f"v_cvt_pk_bf16_f32 v{T+i}, v{FIN + 2*i}, v{FIN + 2*i + 1}")
        a(f"""
        s_mul_i32 s{sT}, s27, {112 * 1024}
        s_lshl_b32 s{sT2}, s26, 11
        s_add_u32 s{sT}, s{sT}, s{sT2}
        s_add_u32 s{sT}, s{sT}, {WS_G}
        buffer_store_dwordx4 {vr(T,4)}, v2, s[{WS}:{WS+3}], s{sT} offen
        buffer_store_dwordx4 {vr(T+4,4)}, v2, s[{WS}:{WS+3}], s{sT} offen offset:1024
        """)
    else:
        for i in range(8):
            a(f"v_cvt_pk_bf16_f32 v{T+i}, v{FIN + 2*i}, v{FIN + 2*i + 1}")
        a(f"""
        s_lshl_b32 s{sT}, s26, 15
        s_lshl_b32 s{sT2}, s27, 6
        s_add_u32 s{sT}, s{sT}, s{sT2}
        v_and_b32 v10, 31, v1
        v_lshlrev_b32 v10, 10, v10
        v_lshl_add_u32 v10, v7, 4, v10
        buffer_store_dwordx4 {vr(T,4)}, v10, s[{OUT}:{OUT+3}], s{sT} offen
        buffer_store_dwordx4 {vr(T+4,4)}, v10, s[{OUT}:{OUT+3}], s{sT} offen offset:32
        """)
    if stamp:
        a("s_waitcnt vmcnt(0)")
        st.mark(a)
        st.flush(a, 16, sw, sT)
    a(f"L_{name}_end:")
    a("s_endpgm")
    return a
```

```python
import sys
from common import *
import k1_qkv, k2_attn, k3_wo, k45_mlp

NAME = "sequential_preLN__softmax_full_mha__mixer_token_mlp__prompt"
HEADER = open(f"cdna_kernels/{NAME}.s.ref").read().split("; Override launch")[0]


def build(stamp=False, **kw):
    ks = [("qkv_kernel", k1_qkv.gen(stamp), 256, 256, k1_qkv.LDS),
          ("attn_kernel", k2_attn.gen(stamp, code_labels=("wo_kernel", "L_code_end-wo_kernel-4")), 256, 256, k2_attn.LDS),
          ("wo_kernel", k3_wo.gen(stamp), 256, 256, k3_wo.LDS),
          ("mlp1_kernel", k45_mlp.gen(1, stamp), 256, 256, k45_mlp.LDS),
          ("mlp2_kernel", k45_mlp.gen(2, stamp), 256, 256, k45_mlp.LDS)]
    return assemble(ks)


def assemble(ks):
    s = HEADER
    for n, a, g, b, l in ks:
        s += f"; @launch kernel={n} grid=({g},1,1) block=({b},1,1) lds={l}\n"
    s += '.amdgcn_target "amdgcn-amd-amdhsa--gfx950"\n.text\n'
    done = set()
    for n, a, g, b, l in ks:
        if n not in done:
            s += kernel_text(n, a)
        done.add(n)
    s += 'L_code_end:\n.section .rodata,"a"\n'
    done = set()
    for n, a, g, b, l in ks:
        if n not in done:
            s += kernel_desc(n, a)
        done.add(n)
    return s


if __name__ == "__main__":
    out = sys.argv[1] if len(sys.argv) > 1 else f"cdna_kernels/{NAME}.s"
    open(out, "w").write(build(stamp=False))
    open("stamped.s", "w").write(build(stamp=True))
    print("written", out)
```

```python
import sys, os, subprocess, struct, ctypes
sys.path.insert(0, "cdna_kernels")
import numpy as np
import cdna_launch as cl

TEMPLATE = """; @launch grid=({grid},1,1) block=({block},1,1) lds={lds}
.amdgcn_target "amdgcn-amd-amdhsa--gfx950"
.text
.globl mb_kernel
.p2align 8
.type mb_kernel,@function
mb_kernel:
    s_load_dwordx2 s[4:5], s[0:1], 0
    s_load_dwordx2 s[6:7], s[0:1], 8
    s_waitcnt lgkmcnt(0)
    s_mov_b32 s8, s4
    s_mov_b32 s9, s5
    s_mov_b32 s10, {outbytes}
    s_mov_b32 s11, 0x00020000
    s_mov_b32 s12, s6
    s_mov_b32 s13, s7
    s_mov_b32 s14, {inbytes}
    s_mov_b32 s15, 0x00020000
    v_mov_b32 v{last}, v0
{init}
    s_barrier
    s_memtime s[20:21]
    s_waitcnt lgkmcnt(0)
    s_mov_b32 s16, {iters}
.p2align 6
L_loop:
{body}
    s_sub_u32 s16, s16, 1
    s_cmp_lg_u32 s16, 0
    s_cbranch_scc1 L_loop
    s_waitcnt vmcnt(0) lgkmcnt(0)
    s_memtime s[22:23]
    s_waitcnt lgkmcnt(0)
    s_sub_u32 s22, s22, s20
    v_lshrrev_b32 v1, 6, v{last}
    s_mul_i32 s3, s2, {wpb}
    v_add_u32 v1, s3, v1
    v_lshlrev_b32 v1, 2, v1
    v_mov_b32 v2, s22
    buffer_store_dword v2, v1, s[8:11], 0 offen
    s_waitcnt vmcnt(0)
    s_endpgm
.section .rodata,"a"
.p2align 6
.amdhsa_kernel mb_kernel
  .amdhsa_next_free_vgpr {nvgpr}
  .amdhsa_next_free_sgpr 96
  .amdhsa_accum_offset {accum}
  .amdhsa_group_segment_fixed_size 0
  .amdhsa_kernarg_size 16
  .amdhsa_user_sgpr_count 2
  .amdhsa_user_sgpr_kernarg_segment_ptr 1
  .amdhsa_system_sgpr_workgroup_id_x 1
.end_amdhsa_kernel
"""

def build(name, body, init="", grid=256, block=256, lds=0, iters=1000, nvgpr=128, inbytes=1<<24):
    wpb = block // 64
    src = TEMPLATE.format(grid=grid, block=block, lds=lds, outbytes=grid*wpb*4, inbytes=inbytes,
                          init=init, body=body, iters=iters, wpb=wpb, nvgpr=nvgpr, accum=min(256,(nvgpr+3)//4*4), last=min(nvgpr,256)-1)
    full = cl.with_harness_metadata(src, "mb_kernel", 2)
    open(f"/tmp/{name}.s", "w").write(full)
    r = subprocess.run(["clang", "-x", "assembler", "-target", "amdgcn-amd-amdhsa", "-mcpu=gfx950",
                        f"/tmp/{name}.s", "-o", f"/tmp/{name}.co"], capture_output=True, text=True)
    assert r.returncode == 0, r.stderr
    return f"/tmp/{name}.co"

_in = None
def run(name, body, init="", grid=256, block=256, lds=0, iters=200, nvgpr=128, reps=3, unroll=16):
    global _in
    body = "\n".join([body]*unroll)
    co = build("mbk", body, init, grid, block, lds, iters, nvgpr)
    iters = iters*unroll
    if not os.path.exists('/dev/kfd'):
        print(name, "assembled"); return
    k = cl.AsmKernel(co, "mb_kernel")
    wpb = block // 64
    out = cl.DeviceBuffer(grid*wpb*4)
    if _in is None:
        _in = cl.DeviceBuffer.from_numpy((np.random.randn(1<<22)*0.5).astype(np.float32))
    ka = cl.pack_ptr_kernargs([out.ptr, _in.ptr])
    res = []
    for _ in range(reps):
        k.launch((grid,1,1), (block,1,1), ka, lds)
        cl.hip_check(cl._hip.hipDeviceSynchronize())
        o = out.to_numpy(np.uint32, (grid*wpb,))
        res.append(o)
    o = res[-1]
    wg = o.reshape(grid, wpb).max(axis=1)
    print(f"{name:44s} block={block:4d} cyc/iter: wgmax med={np.median(wg)/iters:8.1f} min={o.min()/iters:8.1f} max={o.max()/iters:8.1f}   per-wave-per-simd: {np.median(wg)/iters/(block/256):8.1f}")
    k.unload()
```

```python
from mbrun import run
init = "\n".join(f"    v_mov_b32 v{i}, 0.5" for i in range(2,120)) + "\n    v_and_b32 v2, 63, v127\n    v_lshlrev_b32 v2, 4, v2\n    s_mov_b32 m0, 0\n    s_mov_b32 s30, 0\n    s_mov_b32 s40, s6\n    s_or_b32 s41, s7, 0x00100000\n    s_mov_b32 s42, 0x100000\n    s_mov_b32 s43, 0x00820000\n"
M = "    v_mfma_f32_32x32x16_bf16 v[32:47], v[4:7], v[8:11], 0"
def body(x, pos="mfma"):
    b=[]
    for i in range(16):
        b.append(f"    v_exp_f32 v{64+i}, v{80+i}")
        if i==5:
            b.append(M)
            if pos=="mfma" and x: b.append(x)
        if i==10 and pos=="exp" and x: b.append(x)
    b.append("    s_waitcnt vmcnt(4)")
    return "\n".join(b)
for block in (64, 256):
    run("base", body(None), init, block=block, lds=65536)
    for nm,x in (("dma x4", "    buffer_load_dwordx4 v2, s[12:15], s30 offen lds"),
                 ("load x4 reg", "    buffer_load_dwordx4 v[100:103], v2, s[12:15], s30 offen"),
                 ("load dword reg", "    buffer_load_dword v100, v2, s[12:15], s30 offen"),
                 ("global lds x4 saddr", "    global_load_lds_dwordx4 v2, s[6:7]"),
                 ("dma x4 addtid off", "    buffer_load_dwordx4 off, s[40:43], s30 lds"),
                 ("dma x4 x2", "    buffer_load_dwordx4 v2, s[12:15], s30 offen lds\n    buffer_load_dwordx4 v2, s[12:15], s30 offen offset:1024 lds"),
                 ("ds_read_b128", "    ds_read_b128 v[100:103], v2"),
                 ("store x4", "    buffer_store_dwordx4 v[100:103], v2, s[12:15], s30 offen"),
                 ):
        run(nm+" after mfma", body(x), init, block=block, lds=65536)
        run(nm+" after exp", body(x,"exp"), init, block=block, lds=65536)
```

```python
from asmlib import Asm, kernel_text, kernel_desc

S, D, H, F = 2048, 512, 32, 1792
MB = 1 << 20
WS_Q = 0 * MB
WS_K = 2 * MB
WS_V = 4 * MB
WS_O = 6 * MB
WS_H = 8 * MB
WS_Z = 10 * MB
WS_G = 12 * MB
WS_ST = 14 * MB
WS_FL = 14 * MB + 512 * 1024
WS_STAMP = 15 * MB
WS_BYTES = 16 * MB

ARG = dict(x=0, wqkv=8, wo=16, bx=24, w1=32, b1=40, w2=48, b2=56, out=64, dbg=72, ws=80)
NBYTES = dict(x=S * D * 2, wqkv=D * 3 * D * 2, wo=D * D * 2, w1=S * F * 2, b1=F * 2, w2=F * S * 2, b2=S * 2,
              out=S * D * 2, dbg=256, ws=WS_BYTES)

LOG2E = 1.4426950408889634
EPS = 1e-5


def f32(x):
    import struct
    return "0x%08x" % struct.unpack("<I", struct.pack("<f", x))[0]


def load_srds(a, names_regs):
    for n, r in names_regs:
        a(f"s_load_dwordx2 s[{r}:{r+1}], s[0:1], {ARG[n]}")
    for n, r in names_regs:
        a(f"s_mov_b32 s{r+2}, {NBYTES[n]}")
        a(f"s_mov_b32 s{r+3}, 0x00020000")


def vr(b, n):
    return f"v[{b}:{b+n-1}]" if n > 1 else f"v{b}"


def ar(b, n):
    return f"a[{b}:{b+n-1}]" if n > 1 else f"a{b}"


class Stamps:
    def __init__(self, on, kidx, sbase, ws_srd):
        self.on, self.kidx, self.sbase, self.ws = on, kidx, sbase, ws_srd
        self.n = 0

    def mark(self, a):
        if not self.on:
            return
        r = self.sbase + 4 * self.n
        a(f"s_memrealtime s[{r}:{r+1}]")
        a(f"s_memtime s[{r+2}:{r+3}]")
        self.n += 1

    def flush(self, a, vtmp, swave, stmp):
        if not self.on:
            return
        l = a.label("L_nostamp")
        a(f"s_cmp_lg_u32 s{swave}, 0")
        a(f"s_cbranch_scc1 {l}")
        a(f"s_lshl_b32 s{stmp}, s2, 7")
        a(f"s_add_u32 s{stmp}, s{stmp}, {WS_STAMP + self.kidx * 32768}")
        a(f"v_mov_b32 v{vtmp}, 0")
        for i in range(self.n):
            a(f"v_mov_b32 v{vtmp+1}, s{self.sbase + 4 * i}")
            a(f"buffer_store_dword v{vtmp+1}, v{vtmp}, s[{self.ws}:{self.ws+3}], s{stmp} offen offset:{4*i}")
            a(f"v_mov_b32 v{vtmp+1}, s{self.sbase + 4 * i + 2}")
            a(f"buffer_store_dword v{vtmp+1}, v{vtmp}, s[{self.ws}:{self.ws+3}], s{stmp} offen offset:{64 + 4*i}")
        a(f"{l}:")


def code_prefetch(a, lo, nbytes_expr, vtmp, stmp, lines_per_wave=2, waves=4):
    l = a.label("L_pc")
    sh = (lines_per_wave * waves).bit_length() - 1
    a(f"""
    s_getpc_b64 s[{stmp}:{stmp+1}]
    {l}:
    s_add_u32 s{stmp}, s{stmp}, {lo}-{l}
    s_addc_u32 s{stmp+1}, s{stmp+1}, {'-1' if lo == '__self__' else 0}
    s_lshr_b32 s{stmp+2}, s2, 3
    s_lshl_b32 s{stmp+2}, s{stmp+2}, {sh}
    v_lshrrev_b32 v{vtmp}, {(64 // lines_per_wave).bit_length() - 1}, v0
    v_add_lshl_u32 v{vtmp}, v{vtmp}, s{stmp+2}, 7
    v_min_u32 v{vtmp}, {nbytes_expr}, v{vtmp}
    global_load_dword v{vtmp+1}, v{vtmp}, s[{stmp}:{stmp+1}]
    """)
```

```python
from common import *

LDS = 131072 + 4096


def gen(stamp=False, pf=True):
    a = Asm()
    X, W, WS = 4, 8, 12
    sw, stb, scg, stt, shp = 16, 17, 18, 19, 20
    sXa, sXb, sWa, sWb, sMx, sMw, sT, sT2, sONE = 21, 22, 23, 24, 25, 26, 27, 28, 30
    st = Stamps(stamp, 0, 40, WS)
    st.mark(a)
    a("s_cmp_ge_u32 s2, 256")
    a("s_cbranch_scc1 L_k1_end")
    load_srds(a, [("x", X), ("wqkv", W), ("ws", WS)])
    if pf:
        code_prefetch(a, "L_k1_pf", "L_code_end-L_k1_pf-4", 180, 36)
        a("L_k1_pf:")
    a(f"""
    v_lshrrev_b32 v2, 6, v0
    v_and_b32 v1, 63, v0
    v_readfirstlane_b32 s{sw}, v2
    s_and_b32 s{sT}, s2, 7
    s_lshr_b32 s{sT2}, s2, 3
    s_lshr_b32 s{stb}, s{sT}, 1
    s_lshl_b32 s{stb}, s{stb}, 3
    s_and_b32 s{scg}, s{sT2}, 7
    s_add_u32 s{stb}, s{stb}, s{scg}
    s_and_b32 s{scg}, s{sT}, 1
    s_lshl_b32 s{scg}, s{scg}, 2
    s_lshr_b32 s{sT2}, s{sT2}, 3
    s_add_u32 s{scg}, s{scg}, s{sT2}
    s_add_u32 s{sT}, s{stb}, s{scg}
    s_and_b32 s{sT}, s{sT}, 1
    s_lshl_b32 s{sXa}, s{sT}, 9
    s_xor_b32 s{sXb}, s{sXa}, 512
    s_mul_i32 s{sWa}, s{sXa}, 1536
    s_mul_i32 s{sWb}, s{sXb}, 1536
    s_lshl_b32 s{sMx}, s{sw}, 11
    s_mul_i32 s{sMw}, s{sw}, 6144
    s_add_u32 s{sMw}, s{sMw}, 8192
    """)
    a(f"""
    s_lshl_b32 s{sT}, s{stb}, 16
    s_lshl_b32 s{sT2}, s{sw}, 14
    s_add_u32 s{sT}, s{sT}, s{sT2}
    v_lshrrev_b32 v4, 3, v1
    v_lshlrev_b32 v4, 10, v4
    v_add_u32 v4, s{sT}, v4
    v_lshrrev_b32 v5, 4, v1
    v_and_b32 v6, 7, v1
    v_xor_b32 v5, v5, v6
    v_lshl_add_u32 v2, v5, 4, v4
    v_xor_b32 v5, 4, v5
    v_lshl_add_u32 v3, v5, 4, v4
    v_add_u32 v3, {8192 - 1024}, v3
    """)
    a(f"""
    s_mul_i32 s{sT}, s{sw}, {16 * 3072}
    s_lshl_b32 s{sT2}, s{scg}, 7
    s_add_u32 s{sT}, s{sT}, s{sT2}
    v_bfe_u32 v6, v1, 2, 3
    v_mul_u32_u24 v6, 3072, v6
    v_lshrrev_b32 v7, 5, v1
    v_lshl_add_u32 v6, v7, 6, v6
    v_and_b32 v7, 3, v1
    v_lshl_add_u32 v6, v7, 4, v6
    v_add_u32 v4, s{sT}, v6
    v_add_u32 v5, {8 * 3072}, v4
    """)

    def dma(c):
        slot = (c & 3) * 32768
        sx, sww = (sXa, sWa) if c < 4 else (sXb, sWb)
        t = f"c{c}"
        a(f"s_add_u32 m0, s{sMx}, {slot}")
        a(f"s_add_u32 s{sT}, s{sx}, {(c & 3) * 128}")
        a(f"buffer_load_dwordx4 v2, s[{X}:{X+3}], s{sT} offen lds", tag=t)
        a(f"buffer_load_dwordx4 v3, s[{X}:{X+3}], s{sT} offen offset:1024 lds", tag=t)
        a(f"s_add_u32 m0, s{sMw}, {slot}")
        a(f"s_add_u32 s{sT2}, s{sww}, {(c & 3) * 196608}")
        for seg in range(3):
            a(f"buffer_load_dwordx4 v4, s[{W}:{W+3}], s{sT2} offen offset:{seg*1024} lds", tag=t)
        a(f"s_add_u32 m0, s{sMw}, {slot + 3072}")
        for seg in range(3):
            a(f"buffer_load_dwordx4 v5, s[{W}:{W+3}], s{sT2} offen offset:{seg*1024} lds", tag=t)

    if stamp:
        a("s_waitcnt lgkmcnt(0)")
    st.mark(a)
    for c in range(4):
        dma(c)
    st.mark(a)
    a(f"""
    s_lshl_b32 s{sT}, s2, 10
    s_add_u32 s{sT}, s{sT}, {WS_ST}
    v_lshlrev_b32 v6, 2, v0
    v_mov_b32 v7, -1
    buffer_store_dword v7, v6, s[{WS}:{WS+3}], s{sT} offen
    """)
    a(f"""
    s_and_b32 s{stt}, s{sw}, 1
    s_lshr_b32 s{shp}, s{sw}, 1
    s_lshl_b32 s{sT}, s{stt}, 12
    v_and_b32 v16, 31, v1
    v_lshrrev_b32 v17, 5, v1
    v_bfe_u32 v18, v1, 1, 3
    v_xor_b32 v18, v18, v17
    v_lshlrev_b32 v18, 4, v18
    v_lshl_add_u32 v18, v16, 7, v18
    v_add_u32 v6, s{sT}, v18
    v_xor_b32 v7, 32, v6
    v_xor_b32 v8, 64, v6
    v_xor_b32 v9, 96, v6
    v_add_u32 v10, 0x10000, v6
    v_add_u32 v11, 0x10000, v7
    v_add_u32 v12, 0x10000, v8
    v_add_u32 v13, 0x10000, v9
    s_lshl_b32 s{sT}, s{shp}, 9
    v_mul_u32_u24 v14, 3072, v17
    v_bfe_u32 v18, v1, 2, 2
    v_lshl_add_u32 v14, v18, 6, v14
    v_bfe_u32 v18, v1, 4, 1
    v_lshl_add_u32 v14, v18, 5, v14
    v_and_b32 v18, 3, v1
    v_lshl_add_u32 v14, v18, 3, v14
    v_add_u32 v14, s{sT}, v14
    v_add_u32 v15, 0x10000, v14
    """)
    SEL, IDX, SXX, S0, S1, TMP = 16, 20, 21, 104, 108, 112
    a(f"""
    v_bfe_u32 v22, v1, 3, 1
    v_lshrrev_b32 v23, 5, v1
    v_cmp_eq_u32 s[32:33], v22, v23
    v_and_b32 v22, 2, v1
    v_cmp_eq_u32 vcc, 0, v22
    s_and_b64 s[32:33], s[32:33], vcc
    v_and_b32 v22, 4, v1
    v_cmp_eq_u32 vcc, 0, v22
    s_and_b64 s[34:35], s[32:33], vcc
    s_andn2_b64 s[32:33], s[32:33], vcc
    v_mov_b32 v22, 0x3f803f80
    v_cndmask_b32 v{SEL}, 0, v22, s[34:35]
    v_cndmask_b32 v{SEL+1}, 0, v22, s[34:35]
    v_cndmask_b32 v{SEL+2}, 0, v22, s[32:33]
    v_cndmask_b32 v{SEL+3}, 0, v22, s[32:33]
    v_and_b32 v22, 1, v1
    v_mul_u32_u24 v22, 0xaaaa, v22
    v_add_u32 v{IDX}, 0x4444, v22
    v_mov_b32 v{SXX}, 0
    v_mov_b32 v{SXX+1}, 0
    """)
    FR = 24
    AQ, AK, AV = 56, 72, 88
    for r in range(8):
        a(f"v_mov_b32 v{S0+r}, 0")

    def reads(n):
        c, j = n >> 2, n & 3
        slot = c & 3
        hi, so = slot >> 1, (slot & 1) * 32768
        b = FR + 16 * (n & 1)
        a(f"ds_read_b128 {vr(b,4)}, v{6 + j + 4*hi} offset:{so}", tag=f"r{n}")
        for seg in range(3):
            for e in range(2):
                a(f"ds_read_b64_tr_b16 {vr(b + 4 + 4*seg + 2*e, 2)}, v{14 + hi} offset:{so + 8192 + j*6144 + seg*1024 + e*256}", tag=f"r{n}")

    def compute(n):
        b = FR + 16 * (n & 1)
        xf = vr(b, 4)
        def c(acc):
            return "0" if n == 0 else vr(acc, 16)
        sq = []
        for i in range(4):
            sq.append(f"v_lshlrev_b32 v{TMP+2*i}, 16, v{b+i}")
            sq.append(f"v_and_b32 v{TMP+2*i+1}, 0xffff0000, v{b+i}")
        for i in range(8):
            sq.append(f"v_fmac_f32 v{SXX + (i & 1)}, v{TMP+i}, v{TMP+i}")
        a(f"v_mfma_f32_32x32x16_bf16 {vr(AQ,16)}, {vr(b+4,4)}, {xf}, {c(AQ)}")
        for d in sq[:6]:
            a(d)
        a(f"v_mfma_f32_32x32x16_bf16 {vr(AK,16)}, {vr(b+8,4)}, {xf}, {c(AK)}")
        for d in sq[6:12]:
            a(d)
        a(f"v_smfmac_f32_16x16x64_bf16 {vr(S0,4)}, {vr(SEL,4)}, {vr(b,8)}, v{IDX}")
        a(sq[12])
        a(f"v_smfmac_f32_16x16x64_bf16 {vr(S1,4)}, {vr(SEL,4)}, {vr(b+8,8)}, v{IDX}")
        a(sq[13])
        a(f"v_mfma_f32_32x32x16_bf16 {vr(AV,16)}, {xf}, {vr(b+12,4)}, {c(AV)}")
        for d in sq[14:]:
            a(d)

    for n in range(32):
        c, j = n >> 2, n & 3
        if j == 0:
            a.wait(f"c{c}", f"r{n-1}")
            a("s_barrier")
            if c == 0:
                st.mark(a)
            reads(n)
            if 1 <= c <= 4:
                dma(c + 3)
        else:
            reads(n)
        if n > 0:
            compute(n - 1)
    compute(31)
    st.mark(a)

    MU, RS, RQ = 22, 18, 24
    a(f"""
    s_lshl_b32 s{sT}, s{sw}, 10
    s_add_u32 s{sT}, s{sT}, 131072
    v_add_f32 v{SXX}, v{SXX}, v{SXX+1}
    v_lshl_add_u32 v3, v1, 2, s{sT}
    v_and_b32 v2, 31, v1
    v_lshl_add_u32 v2, v2, 2, s{sT}
    v_mov_b32 v25, v{SXX}
    v_add_f32 v{S0}, v{S0}, v{S0+1}
    v_add_f32 v{S1}, v{S1}, v{S1+1}
    v_permlane32_swap_b32 v25, v{SXX}
    ds_write_b32 v3, v{S0} offset:0
    ds_write_b32 v3, v{S1} offset:256
    v_mov_b32 v26, v{S1}
    v_permlane32_swap_b32 v26, v{S0}
    """)
    a(f"""
    v_add_f32 v{SXX}, v{SXX}, v25
    v_mov_b32 v27, v26
    v_mov_b32 v28, v{S0}
    v_permlane32_swap_b32 v27, v26
    v_permlane32_swap_b32 v28, v{S0}
    v_mul_f32 v{MU}, {f32(-1.0/D)}, v26
    v_mov_b32 v26, v28
    v_mul_f32 v{SXX}, {f32(1.0/D)}, v{SXX}
    v_fma_f32 v{SXX}, -v{MU}, v{MU}, v{SXX}
    v_max_f32 v{SXX}, 0, v{SXX}
    v_add_f32 v{SXX}, {f32(EPS)}, v{SXX}
    v_rsq_f32 v{RS}, v{SXX}
    ds_write_b32 v2, v{MU} offset:512
    v_lshrrev_b32 v4, 5, v1
    v_lshl_add_u32 v4, v4, 4, s{sT}
    ds_write_b32 v2, v{RS} offset:640
    v_mul_f32 v{RQ}, {f32(0.25*LOG2E)}, v{RS}
    """)
    B0, B1, B2, B3 = 112, 128, 144, 160
    for q in range(4):
        a(f"ds_read_b128 {vr(B0+4*q,4)}, v4 offset:{128 + 32*q}")
    for q in range(4):
        a(f"ds_read_b128 {vr(B1+4*q,4)}, v4 offset:{256 + 32*q}")
    for q in range(4):
        a(f"ds_read_b128 {vr(B2+4*q,4)}, v4 offset:{512 + 32*q}")
    for q in range(4):
        a(f"ds_read_b128 {vr(B3+4*q,4)}, v4 offset:{640 + 32*q}")
    a(f"""
    s_lshl_b32 s{sT}, s{scg}, 1
    s_add_u32 s{sT}, s{sT}, s{shp}
    s_lshl_b32 s{sT}, s{sT}, 17
    s_lshl_b32 s{sT2}, s{stb}, 1
    s_add_u32 s{sT2}, s{sT2}, s{stt}
    s_lshl_b32 s{sT2}, s{sT2}, 10
    s_add_u32 s{sT}, s{sT}, s{sT2}
    v_lshlrev_b32 v5, 4, v1
    v_and_b32 v6, 0x33, v1
    v_bfe_u32 v7, v1, 2, 1
    v_lshl_add_u32 v6, v7, 3, v6
    v_bfe_u32 v7, v1, 3, 1
    v_lshl_add_u32 v6, v7, 2, v6
    v_lshlrev_b32 v6, 4, v6
    v_and_b32 v7, 15, v1
    v_lshlrev_b32 v7, 4, v7
    v_lshrrev_b32 v8, 5, v1
    v_lshl_add_u32 v7, v8, 8, v7
    v_bfe_u32 v8, v1, 4, 1
    v_lshl_add_u32 v7, v8, 16, v7
    """)
    P = 28
    for (acc, bc, scale, base, addr) in ((AQ, B0, RQ, WS_Q, 5), (AK, B1, RS, WS_K, 6)):
        for i in range(8):
            a(f"v_pk_fma_f32 {vr(acc+2*i,2)}, {vr(bc+2*i,2)}, {vr(MU,2)}, {vr(acc+2*i,2)} op_sel_hi:[1,0,1]")
        for i in range(8):
            a(f"v_pk_mul_f32 {vr(acc+2*i,2)}, {vr(acc+2*i,2)}, {vr(scale,2)} op_sel_hi:[1,0]")
        for i in range(8):
            a(f"v_cvt_pk_bf16_f32 v{P+i}, v{acc+2*i}, v{acc+2*i+1}")
        a(f"s_add_u32 s{sT2}, s{sT}, {base}")
        a(f"buffer_store_dwordx4 {vr(P,4)}, v{addr}, s[{WS}:{WS+3}], s{sT2} offen")
        a(f"s_add_u32 s{sT2}, s{sT}, {base + 65536}")
        a(f"buffer_store_dwordx4 {vr(P+4,4)}, v{addr}, s[{WS}:{WS+3}], s{sT2} offen")
        P += 8
    for i in range(8):
        a(f"v_pk_fma_f32 {vr(AV+2*i,2)}, {vr(B2+2*i,2)}, v[26:27], {vr(AV+2*i,2)} op_sel_hi:[1,0,1]")
    for i in range(8):
        a(f"v_pk_mul_f32 {vr(AV+2*i,2)}, {vr(AV+2*i,2)}, {vr(B3+2*i,2)}")
    for i in range(8):
        a(f"v_cvt_pk_bf16_f32 v{P+i}, v{AV+2*i}, v{AV+2*i+1}")
    a(f"s_add_u32 s{sT2}, s{sT}, {WS_V}")
    a(f"buffer_store_dwordx4 {vr(P,4)}, v7, s[{WS}:{WS+3}], s{sT2} offen")
    a(f"buffer_store_dwordx4 {vr(P+4,4)}, v7, s[{WS}:{WS+3}], s{sT2} offen offset:512")
    if stamp:
        a("s_waitcnt vmcnt(0)")
        st.mark(a)
        st.flush(a, 2, sw, sT)
    a("L_k1_end:")
    a("s_endpgm")
    return a
```

```python
from common import *

VOFF = 65536
VGRP = 4096 + 32
LDS = VOFF + 16 * VGRP


def gen(stamp=False, prefetch=True, code_labels=None):
    a = Asm()
    WS, W1, W2, WO, X = 4, 8, 12, 28, 32
    sw, shead, sqt, sT, sT2, sSRC, sLDS, sPASS, sSTEP, sxcd, sloc = range(16, 27)
    st = Stamps(stamp, 1, 40, WS)
    st.mark(a)
    a("s_cmp_ge_u32 s2, 256")
    a("s_cbranch_scc1 L_k2_end")
    load_srds(a, [("ws", WS), ("w1", W1), ("w2", W2), ("wo", WO), ("x", X)])
    QF, IDX = [4, 8], 3
    a(f"""
    v_lshrrev_b32 v2, 6, v0
    v_and_b32 v1, 63, v0
    v_readfirstlane_b32 s{sw}, v2
    v_lshlrev_b32 v2, 4, v1
    s_and_b32 s{sxcd}, s2, 7
    s_lshr_b32 s{sloc}, s2, 3
    s_lshl_b32 s{shead}, s{sxcd}, 2
    s_and_b32 s{sT}, s{sloc}, 3
    s_add_u32 s{shead}, s{shead}, s{sT}
    s_lshr_b32 s{sqt}, s{sloc}, 2
    s_lshl_b32 s{sqt}, s{sqt}, 2
    s_add_u32 s{sqt}, s{sqt}, s{sw}
    s_lshl_b32 s{sqt}, s{sqt}, 1
    s_lshl_b32 s{sSRC}, s{shead}, 16
    s_lshl_b32 s{sT}, s{sqt}, 10
    s_add_u32 s{sT}, s{sT}, s{sSRC}
    s_lshr_b32 s{sT2}, s{sw}, 1
    s_lshl_b32 s{sLDS}, s{sT2}, 12
    s_add_u32 s{sSRC}, s{sSRC}, s{sLDS}
    s_bitcmp1_b32 s{sw}, 0
    s_cselect_b32 s{sSTEP}, {VGRP - 4096}, 0
    s_cselect_b32 s{sLDS}, {VOFF}, 0
    s_cselect_b32 s{sPASS}, {WS_V - WS_K}, 0
    s_add_u32 s{sSTEP}, s{sSTEP}, 4096
    s_add_u32 s{sSRC}, s{sSRC}, s{sPASS}
    s_add_u32 s{sSRC}, s{sSRC}, {WS_K}
    s_mul_i32 s{sT2}, s{sT2}, s{sSTEP}
    s_add_u32 m0, s{sLDS}, s{sT2}
    s_lshl_b32 s{sSTEP}, s{sSTEP}, 1
    """)

    def dma_head(s):
        if s:
            a(f"s_add_u32 m0, m0, s{sSTEP}")
            a(f"s_add_u32 s{sSRC}, s{sSRC}, 8192")

    def dma_one(s, i):
        a(f"buffer_load_dwordx4 v2, s[{WS}:{WS+3}], s{sSRC} offen offset:{i*1024} lds", tag=f"c{s}")

    for i in range(4):
        dma_one(0, i)
    a(f"buffer_load_dwordx4 {vr(QF[0],4)}, v2, s[{WS}:{WS+3}], s{sT} offen")
    a(f"buffer_load_dwordx4 {vr(QF[1],4)}, v2, s[{WS}:{WS+3}], s{sT} offen offset:1024")
    st.mark(a)
    AV = 12
    a(f"""
    v_and_b32 v20, 1, v1
    v_cmp_eq_u32 vcc, 0, v20
    v_mov_b32 v21, 0x3f803f80
    v_cndmask_b32 v24, 0, v21, vcc
    v_bfe_u32 v21, v1, 1, 4
    v_mul_u32_u24 v21, {VGRP}, v21
    v_lshl_add_u32 v21, v20, 4, v21
    v_add_u32 v21, {VOFF + 4096}, v21
    v_mov_b32 v25, v24
    v_mov_b32 v26, v24
    v_mov_b32 v27, v24
    """)
    a("ds_write_b128 v21, v[24:27]", tag="ones")
    a(f"""
    v_and_b32 v20, 15, v1
    v_lshlrev_b32 v20, 4, v20
    v_lshrrev_b32 v21, 5, v1
    v_lshl_add_u32 v20, v21, 8, v20
    v_add_u32 v20, {VOFF}, v20
    v_and_b32 v21, 11, v1
    v_min_u32 v21, 1, v21
    v_lshlrev_b32 v21, 4, v21
    v_add_u32 v21, {VOFF + 4096}, v21
    v_and_b32 v22, 16, v1
    v_cmp_eq_u32 vcc, 0, v22
    v_mov_b32 v{IDX}, 0xdddd
    s_mov_b32 s{sPASS}, 0
    """)
    for i in range(8):
        a(f"v_cndmask_b32 v{AV+i}, v21, v20, vcc")
        if i < 7:
            a("v_add_u32 v20, 512, v20")
    KR = [20, 24]
    VA = [28, 32]
    VB = [36, 40]
    CM = [44, 60]
    OA = [76, 92]
    SB = [108, 124, 140]
    PF, PD = 156, 160
    for i in range(32):
        a(f"v_mov_b32 v{OA[0]+i}, 0")

    def rdK(t):
        a(f"ds_read_b128 {vr(KR[t&1],4)}, v2 offset:{t*1024}")

    def rdV(t, j):
        a(f"ds_read_b128 {vr((VA, VB)[j][t&1],4)}, v{AV + 2*(t&3) + j} offset:{(t >> 2) * VGRP}")

    def qk(u):
        a(f"v_mfma_f32_32x32x16_bf16 {vr(SB[u%3],16)}, {vr(KR[(u>>1)&1],4)}, {vr(QF[u&1],4)}, 0")

    def pv(u, j):
        a(f"v_smfmac_f32_32x32x32_bf16 {vr(OA[u&1],16)}, {vr((VA, VB)[j][(u>>1)&1],4)}, {vr(SB[u%3]+8*j,8)}, v{IDX}")

    side = {}
    def at(u, slot, f):
        side.setdefault((u, slot), []).append(f)
    u = 0
    for s in range(1, 8):
        for i in range(4):
            if i == 0:
                at(u, i & 1, lambda s=s: dma_head(s))
            at(u, i & 1, lambda s=s, i=i: dma_one(s, i))
            u += i & 1
    if prefetch:
        def pf_w2():
            a(f"""
            s_and_b32 s{sT}, s{sxcd}, 1
            s_lshl_b32 s{sT}, s{sT}, 5
            s_add_u32 s{sT}, s{sT}, s{sloc}
            s_lshl_b32 s{sT}, s{sT}, 2
            s_add_u32 s{sT}, s{sT}, s{sw}
            s_mul_i32 s{sT}, s{sT}, {7 * 4096}
            s_lshr_b32 s{sT2}, s{sxcd}, 1
            s_lshl_b32 s{sT2}, s{sT2}, 10
            s_add_u32 s{sT}, s{sT}, s{sT2}
            v_lshrrev_b32 v{PF}, 3, v1
            v_min_u32 v{PF}, 6, v{PF}
            v_lshlrev_b32 v{PF}, 12, v{PF}
            v_and_b32 v{PF+1}, 7, v1
            v_lshl_add_u32 v{PF}, v{PF+1}, 7, v{PF}
            buffer_load_dword v{PD}, v{PF}, s[{W2}:{W2+3}], s{sT} offen
            """)
        def pf_w1():
            a(f"""
            s_lshl_b32 s{sT}, s{sloc}, 2
            s_add_u32 s{sT}, s{sT}, s{sw}
            s_mul_i32 s{sT}, s{sT}, {16 * F * 2}
            s_lshr_b32 s{sT2}, s{sxcd}, 1
            s_mul_i32 s{sT2}, s{sT2}, 896
            s_add_u32 s{sT}, s{sT}, s{sT2}
            v_lshrrev_b32 v{PF}, 3, v1
            v_mul_u32_u24 v{PF}, {F * 2}, v{PF}
            v_and_b32 v{PF+1}, 7, v1
            v_min_u32 v{PF+1}, 6, v{PF+1}
            v_lshl_add_u32 v{PF}, v{PF+1}, 7, v{PF}
            buffer_load_dword v{PD}, v{PF}, s[{W1}:{W1+3}], s{sT} offen
            s_add_u32 s{sT}, s{sT}, {8 * F * 2}
            buffer_load_dword v{PD}, v{PF}, s[{W1}:{W1+3}], s{sT} offen
            """)
        def pf_wo():
            a(f"""
            s_lshl_b32 s{sT}, s{sloc}, 2
            s_add_u32 s{sT}, s{sT}, s{sw}
            s_lshl_b32 s{sT}, s{sT}, 12
            v_and_b32 v{PF}, 31, v1
            v_lshlrev_b32 v{PF}, 7, v{PF}
            buffer_load_dword v{PD}, v{PF}, s[{WO}:{WO+3}], s{sT} offen
            s_lshr_b32 s{sT}, s{sT}, 1
            s_lshl_b32 s{sT2}, s{sxcd}, 18
            s_add_u32 s{sT}, s{sT}, s{sT2}
            v_and_b32 v{PF}, 0x7ff, v{PF}
            buffer_load_dword v{PD}, v{PF}, s[{X}:{X+3}], s{sT} offen
            """)
        at(20, 0, pf_w2)
        at(40, 0, pf_w1)
        at(80, 0, pf_wo)
        if code_labels:
            def pf_code():
                lo, n = code_labels
                l = a.label("L_pc")
                a(f"""
                s_getpc_b64 s[36:37]
                {l}:
                s_add_u32 s36, s36, {lo}-{l}
                s_addc_u32 s37, s37, 0
                s_lshl_b32 s{sT}, s{sw}, 13
                v_lshlrev_b32 v{PF}, 7, v1
                v_add_u32 v{PF}, s{sT}, v{PF}
                v_min_u32 v{PF}, {n}, v{PF}
                global_load_dword v{PD}, v{PF}, s[36:37]
                """)
            at(100, 0, pf_code)

    def do_side(u, slot):
        for f in side.get((u, slot), ()):
            f()

    a.wait("c0", "ones")
    a("s_barrier")
    st.mark(a)
    rdK(0)
    rdV(0, 0)
    qk(0)
    NU = 128
    for u in range(NU):
        t, q = u >> 1, u & 1
        if u == 14 or u == 30:
            a.wait(*(["c1"] if u == 14 else [f"c{c}" for c in range(2, 8)]))
            a("s_barrier")
        s = SB[u % 3]
        for i in range(16):
            a(f"v_exp_f32 v{s+i}, v{s+i}")
            if i == 0 and u + 1 < NU:
                qk(u + 1)
                if q == 0 and t + 1 < 64:
                    rdK(t + 1)
            if i == 5:
                if u > 0:
                    pv(u - 1, 1)
                if q == 0:
                    rdV(t, 1)
                do_side(u, 0)
            if i == 10:
                pv(u, 0)
                if q == 1 and t + 1 < 64:
                    rdV(t + 1, 0)
                do_side(u, 1)
    pv(NU - 1, 1)
    st.mark(a)
    T = 20
    a(f"""
    L_k2_check:
    v_mov_b32 v{T+8}, {f32(2.0**-40)}
    v_mov_b32 v{T+9}, {f32(2.0**40)}
    v_mov_b32 v{T+10}, {f32(2.0**120)}
    s_lshl_b32 s{sT}, s{sqt}, 15
    s_lshl_b32 s{sT2}, s{shead}, 10
    s_add_u32 s{sT}, s{sT}, s{sT2}
    s_add_u32 s{sT}, s{sT}, {WS_O}
    s_add_u32 s{sT2}, s{sT}, 32768
    v_rcp_f32 v{T}, v{OA[0]+8}
    """)
    for q in range(2):
        o = OA[q]
        if q:
            a(f"v_rcp_f32 v{T+2}, v{o+8}")
        a(f"""
        v_add_f32 v{T+4}, |v{o}|, |v{o+1}|
        v_add_f32 v{T+5}, |v{o+2}|, |v{o+3}|
        v_add_f32 v{T+6}, |v{o+4}|, |v{o+5}|
        v_add_f32 v{T+7}, |v{o+6}|, |v{o+7}|
        v_add_f32 v{T+4}, v{T+4}, v{T+5}
        v_add_f32 v{T+6}, v{T+6}, v{T+7}
        v_add_f32 v{T+4}, v{T+4}, v{T+6}
        v_cmp_nge_f32 s[{36+2*q}:{37+2*q}], v{o+8}, v{T+8}
        v_cmp_nle_f32 vcc, v{o+8}, v{T+9}
        s_or_b64 s[{36+2*q}:{37+2*q}], s[{36+2*q}:{37+2*q}], vcc
        v_cmp_nle_f32 vcc, v{T+4}, v{T+10}
        s_or_b64 s[{36+2*q}:{37+2*q}], s[{36+2*q}:{37+2*q}], vcc
        """)
    a(f"""
    s_or_b64 s[36:37], s[36:37], s[38:39]
    s_cselect_b32 s{sSTEP}, 1, 0
    s_cmp_gt_u32 s{sSTEP}, s{sPASS}
    s_cbranch_scc1 L_k2_slow
    """)
    for q in range(2):
        o = OA[q]
        for i in range(4):
            a(f"v_pk_mul_f32 {vr(o+2*i,2)}, {vr(o+2*i,2)}, {vr(T+2*q,2)} op_sel_hi:[1,0]")
        for i in range(4):
            a(f"v_cvt_pk_bf16_f32 v{T+4+4*q+i}, v{o+2*i}, v{o+2*i+1}")
        a(f"buffer_store_dwordx4 {vr(T+4+4*q,4)}, v2, s[{WS}:{WS+3}], s{(sT, sT2)[q]} offen")
    if stamp:
        a("s_waitcnt vmcnt(0)")
        st.mark(a)
        st.flush(a, 16, sw, sT)
    a("L_k2_end:")
    a("s_endpgm")
    a("L_k2_slow:")
    a(f"""
    s_mov_b32 s{sPASS}, 1
    s_mov_b32 s{sT}, 0
    v_mov_b32 v28, v2
    v_mov_b32 v29, 0xff800000
    v_mov_b32 v30, 0xff800000
    L_k2_maxloop:
    ds_read_b128 {vr(KR[0],4)}, v28
    v_add_u32 v28, 1024, v28
    v_mfma_f32_32x32x16_bf16 {vr(SB[0],16)}, {vr(KR[0],4)}, {vr(QF[0],4)}, 0
    v_mfma_f32_32x32x16_bf16 {vr(SB[1],16)}, {vr(KR[0],4)}, {vr(QF[1],4)}, 0
    """)
    for q in range(2):
        for i in range(8):
            a(f"v_max3_f32 v{29+q}, v{SB[q]+2*i}, v{SB[q]+2*i+1}, v{29+q}")
    a(f"""
    s_add_u32 s{sT}, s{sT}, 1
    s_cmp_lt_u32 s{sT}, 64
    s_cbranch_scc1 L_k2_maxloop
    v_mov_b32 v31, v29
    v_mov_b32 v32, v30
    v_permlane32_swap_b32 v31, v29
    v_permlane32_swap_b32 v32, v30
    v_max_f32 v29, v29, v31
    v_max_f32 v30, v30, v32
    """)
    for q in range(2):
        for i in range(16):
            a(f"v_sub_f32 v{CM[q]+i}, 0, v{29+q}")
    for i in range(32):
        a(f"v_mov_b32 v{OA[0]+i}, 0")
    a(f"""
    s_mov_b32 s{sT}, 0
    v_mov_b32 v{PF}, v2
    L_k2_slowloop:
    """)
    for i in range(4):
        a(f"ds_read_b128 {vr(KR[0],4)}, v{PF} offset:{i*1024}")
        a(f"ds_read_b128 {vr(VA[0],4)}, v{AV+2*i}")
        a(f"ds_read_b128 {vr(VB[0],4)}, v{AV+2*i+1}")
        for q in range(2):
            a(f"v_mfma_f32_32x32x16_bf16 {vr(SB[q],16)}, {vr(KR[0],4)}, {vr(QF[q],4)}, {vr(CM[q],16)}")
        for q in range(2):
            for r in range(16):
                a(f"v_exp_f32 v{SB[q]+r}, v{SB[q]+r}")
            a(f"v_smfmac_f32_32x32x32_bf16 {vr(OA[q],16)}, {vr(VA[0],4)}, {vr(SB[q],8)}, v{IDX}")
            a(f"v_smfmac_f32_32x32x32_bf16 {vr(OA[q],16)}, {vr(VB[0],4)}, {vr(SB[q]+8,8)}, v{IDX}")
        a("s_nop 7")
    a(f"v_add_u32 v{PF}, 4096, v{PF}")
    for i in range(8):
        a(f"v_add_u32 v{AV+i}, {VGRP}, v{AV+i}")
    a(f"""
    s_add_u32 s{sT}, s{sT}, 1
    s_cmp_lt_u32 s{sT}, 16
    s_cbranch_scc1 L_k2_slowloop
    s_branch L_k2_check
    """)
    return a
```

```python
from build import *
def base():
    return [("qkv_kernel", k1_qkv.gen(False), 256, 256, k1_qkv.LDS),
          ("attn_kernel", k2_attn.gen(False, code_labels=("wo_kernel", "L_code_end-wo_kernel-4")), 256, 256, k2_attn.LDS),
          ("wo_kernel", k3_wo.gen(False), 256, 256, k3_wo.LDS),
          ("mlp1_kernel", k45_mlp.gen(1, False), 256, 256, k45_mlp.LDS),
          ("mlp2_kernel", k45_mlp.gen(2, False), 256, 256, k45_mlp.LDS)]
e = Asm(); e("s_endpgm")
E = ("empty_kernel", e, 256, 256, 0)
open("t_a.s","w").write(assemble(base()))
open("t_b.s","w").write(assemble(base()+[E]*4))
open("t_c.s","w").write(assemble(base()+[E]*8))
b = base()
open("t_d.s","w").write(assemble(b+[b[4]]))
b = base()
open("t_e.s","w").write(assemble([b[0]]+b))
b = base()
open("t_f.s","w").write(assemble(b[:2]+[b[1]]+b[2:]))
```

```python
from common import *

NAME = "sequential_preLN__softmax_full_mha__mixer_token_mlp__prompt"
LDS = 163840
OPT = dict(idle_pf=0, w2nt="nt")

X, WQ, WS, WO, W1, W2, B1, B2, OUT = 4, 8, 12, 16, 20, 24, 28, 32, 36
sw, sxcd, sloc, sNON = 40, 41, 42, 44
sT, sT2, sT3, sCNT = 46, 47, 48, 49
sA = list(range(50, 62))
F1, F2, F3, F4 = (WS_FL + i * 131072 for i in range(4))
WS_NONCE = WS_ST + 262144
SPIN = 0x20000

L_KV_K, L_KV_V = 0, 16384
VGRP = 4096 + 32
L_O = 0
L_WO = 65536
L_X = 131072
L_T = 139264


class RT:
    def __init__(self, on):
        self.on, self.n, self.names = on, 0, []

    SKIP = ("p1_issued",)

    def mark(self, a, name):
        if self.on and name not in self.SKIP:
            assert self.n < 19
            a(f"s_memrealtime s[{64 + 2*self.n}:{65 + 2*self.n}]")
            self.n += 1
            self.names.append(name)

    def flush(self, a):
        if not self.on:
            return
        l = a.label("L_nostamp")
        a(f"s_cmp_lg_u32 s{sw}, 0")
        a(f"s_cbranch_scc1 {l}")
        a(f"s_lshl_b32 s{sT}, s2, 7")
        a(f"s_add_u32 s{sT}, s{sT}, {WS_STAMP}")
        a("v_mov_b32 v4, 0")
        for i in range(self.n):
            a(f"v_mov_b32 v5, s{64 + 2*i}")
            a(f"buffer_store_dword v5, v4, s[{WS}:{WS+3}], s{sT} offen offset:{4*i}")
        a(f"{l}:")


def signal(a, soff, tags, vt):
    a(f"v_mov_b32 v{vt}, s{sNON}")
    a(f"v_mov_b32 v{vt+1}, s{sNON+1}")
    a.wait(*tags)
    a("s_mov_b64 exec, 1")
    a(f"buffer_store_dwordx2 {vr(vt,2)}, off, s[{WS}:{WS+3}], s{soff} sc1")
    a("s_mov_b64 exec, -1")


def poll(a, vaddr, soff, vt):
    l, d = a.label("L_poll"), a.label("L_seen")
    a(f"""
    s_mov_b32 s{sCNT}, 0
    {l}:
    buffer_load_dwordx2 {vr(vt,2)}, v{vaddr}, s[{WS}:{WS+3}], s{soff} offen sc1
    s_add_u32 s{sCNT}, s{sCNT}, 1
    v_cmp_ne_u64 vcc, s[{sNON}:{sNON+1}], {vr(vt,2)}
    s_cbranch_vccz {d}
    s_cmp_lt_u32 s{sCNT}, {SPIN}
    s_cbranch_scc1 {l}
    {d}:
    """)


def prologue(a, st):
    st.mark(a, "start")
    a("s_cmp_ge_u32 s2, 256")
    a("s_cbranch_scc1 L_end")
    names = [("x", X), ("wqkv", WQ), ("ws", WS), ("wo", WO), ("w1", W1), ("w2", W2), ("b1", B1), ("b2", B2), ("out", OUT)]
    for n, r in names:
        a(f"s_load_dwordx2 s[{r}:{r+1}], s[0:1], {ARG[n]}")
    code_prefetch(a, "L_pf_base", "L_code_end-L_pf_base-4", 250, 62 - 2, lines_per_wave=4)
    a("L_pf_base:")
    for n, r in names[:3]:
        a(f"s_mov_b32 s{r+2}, {NBYTES[n]}")
        a(f"s_mov_b32 s{r+3}, 0x00020000")
    a(f"""
    v_lshrrev_b32 v2, 6, v0
    v_and_b32 v1, 63, v0
    v_readfirstlane_b32 s{sw}, v2
    s_and_b32 s{sxcd}, s2, 7
    s_lshr_b32 s{sloc}, s2, 3
    """)
    return names[3:]


def stage1(a, st, late_srds):
    stb, scg, stt, shp, sXa, sXb, sWa, sWb, sMx, sMw = sA[:10]
    a(f"""
    s_lshr_b32 s{stb}, s{sxcd}, 1
    s_lshl_b32 s{stb}, s{stb}, 3
    s_and_b32 s{scg}, s{sloc}, 7
    s_add_u32 s{stb}, s{stb}, s{scg}
    s_and_b32 s{scg}, s{sxcd}, 1
    s_lshl_b32 s{scg}, s{scg}, 2
    s_lshr_b32 s{sT2}, s{sloc}, 3
    s_add_u32 s{scg}, s{scg}, s{sT2}
    s_add_u32 s{sT}, s{stb}, s{scg}
    s_and_b32 s{sT}, s{sT}, 1
    s_lshl_b32 s{sXa}, s{sT}, 9
    s_xor_b32 s{sXb}, s{sXa}, 512
    s_mul_i32 s{sWa}, s{sXa}, 1536
    s_mul_i32 s{sWb}, s{sXb}, 1536
    s_lshl_b32 s{sMx}, s{sw}, 11
    s_mul_i32 s{sMw}, s{sw}, 6144
    s_add_u32 s{sMw}, s{sMw}, 8192
    s_lshl_b32 s{sT}, s{stb}, 16
    s_lshl_b32 s{sT2}, s{sw}, 14
    s_add_u32 s{sT}, s{sT}, s{sT2}
    v_lshrrev_b32 v4, 3, v1
    v_lshlrev_b32 v4, 10, v4
    v_add_u32 v4, s{sT}, v4
    v_lshrrev_b32 v5, 4, v1
    v_and_b32 v6, 7, v1
    v_xor_b32 v5, v5, v6
    v_lshl_add_u32 v2, v5, 4, v4
    v_xor_b32 v5, 4, v5
    v_lshl_add_u32 v3, v5, 4, v4
    v_add_u32 v3, {8192 - 1024}, v3
    s_mul_i32 s{sT}, s{sw}, {16 * 3072}
    s_lshl_b32 s{sT2}, s{scg}, 7
    s_add_u32 s{sT}, s{sT}, s{sT2}
    v_bfe_u32 v6, v1, 2, 3
    v_mul_u32_u24 v6, 3072, v6
    v_lshrrev_b32 v7, 5, v1
    v_lshl_add_u32 v6, v7, 6, v6
    v_and_b32 v7, 3, v1
    v_lshl_add_u32 v6, v7, 4, v6
    v_add_u32 v4, s{sT}, v6
    v_add_u32 v5, {8 * 3072}, v4
    """)

    def dma(c):
        slot = (c & 3) * 32768
        sx, sww = (sXa, sWa) if c < 4 else (sXb, sWb)
        t = f"c{c}"
        def p0():
            a(f"s_add_u32 m0, s{sMx}, {slot}")
            a(f"s_add_u32 s{sT}, s{sx}, {(c & 3) * 128}")
            a(f"buffer_load_dwordx4 v2, s[{X}:{X+3}], s{sT} offen lds", tag=t)
            a(f"buffer_load_dwordx4 v3, s[{X}:{X+3}], s{sT} offen offset:1024 lds", tag=t)
        def p1():
            a(f"s_add_u32 m0, s{sMw}, {slot}")
            a(f"s_add_u32 s{sT2}, s{sww}, {(c & 3) * 196608}")
            a(f"buffer_load_dwordx4 v4, s[{WQ}:{WQ+3}], s{sT2} offen lds", tag=t)
            a(f"buffer_load_dwordx4 v4, s[{WQ}:{WQ+3}], s{sT2} offen offset:1024 lds", tag=t)
        def p2():
            a(f"buffer_load_dwordx4 v4, s[{WQ}:{WQ+3}], s{sT2} offen offset:2048 lds", tag=t)
            a(f"s_add_u32 m0, s{sMw}, {slot + 3072}")
            a(f"buffer_load_dwordx4 v5, s[{WQ}:{WQ+3}], s{sT2} offen lds", tag=t)
        def p3():
            a(f"buffer_load_dwordx4 v5, s[{WQ}:{WQ+3}], s{sT2} offen offset:1024 lds", tag=t)
            a(f"buffer_load_dwordx4 v5, s[{WQ}:{WQ+3}], s{sT2} offen offset:2048 lds", tag=t)
        return [p0, p1, p2, p3]

    for p in dma(0):
        p()
    a(f"s_add_u32 s62, s{WS}, {WS_NONCE}")
    a(f"s_addc_u32 s63, s{WS+1}, 0")
    a(f"s_load_dwordx2 s[{sNON}:{sNON+1}], s[62:63], 0")
    for c in range(1, 4):
        for p in dma(c):
            p()
    st.mark(a, "p1_issued")
    for n, r in late_srds:
        a(f"s_mov_b32 s{r+2}, {NBYTES[n]}")
        a(f"s_mov_b32 s{r+3}, 0x00020000")
    a(f"""
    s_lshl_b32 s{sT}, s2, 10
    s_add_u32 s{sT}, s{sT}, {WS_ST}
    v_lshlrev_b32 v6, 2, v0
    v_mov_b32 v7, -1
    """)
    a(f"buffer_store_dword v7, v6, s[{WS}:{WS+3}], s{sT} offen sc1", tag="st1")
    a(f"""
    s_add_u32 s{sNON}, s{sNON}, 0x9e3779b9
    s_add_u32 s{sNON+1}, s{sNON+1}, 0x7f4a7c15
    s_and_b32 s{stt}, s{sw}, 1
    s_lshr_b32 s{shp}, s{sw}, 1
    s_lshl_b32 s{sT}, s{stt}, 12
    v_and_b32 v16, 31, v1
    v_lshrrev_b32 v17, 5, v1
    v_bfe_u32 v18, v1, 1, 3
    v_xor_b32 v18, v18, v17
    v_lshlrev_b32 v18, 4, v18
    v_lshl_add_u32 v18, v16, 7, v18
    v_add_u32 v6, s{sT}, v18
    v_xor_b32 v7, 32, v6
    v_xor_b32 v8, 64, v6
    v_xor_b32 v9, 96, v6
    v_add_u32 v10, 0x10000, v6
    v_add_u32 v11, 0x10000, v7
    v_add_u32 v12, 0x10000, v8
    v_add_u32 v13, 0x10000, v9
    s_lshl_b32 s{sT}, s{shp}, 9
    v_mul_u32_u24 v14, 3072, v17
    v_bfe_u32 v18, v1, 2, 2
    v_lshl_add_u32 v14, v18, 6, v14
    v_bfe_u32 v18, v1, 4, 1
    v_lshl_add_u32 v14, v18, 5, v14
    v_and_b32 v18, 3, v1
    v_lshl_add_u32 v14, v18, 3, v14
    v_add_u32 v14, s{sT}, v14
    v_add_u32 v15, 0x10000, v14
    """)
    SEL, IDX, SXX, S0, S1, TMP = 16, 20, 21, 104, 108, 112
    a(f"""
    v_bfe_u32 v22, v1, 3, 1
    v_lshrrev_b32 v23, 5, v1
    v_xor_b32 v22, v22, v23
    v_and_b32 v23, 6, v1
    v_or_b32 v22, v22, v23
    v_cmp_eq_u32 vcc, 0, v22
    v_cmp_eq_u32 s[62:63], 4, v22
    v_mov_b32 v22, 0x3f803f80
    v_cndmask_b32 v{SEL}, 0, v22, vcc
    v_cndmask_b32 v{SEL+1}, 0, v22, vcc
    v_cndmask_b32 v{SEL+2}, 0, v22, s[62:63]
    v_cndmask_b32 v{SEL+3}, 0, v22, s[62:63]
    v_and_b32 v22, 1, v1
    v_mul_u32_u24 v22, 0xaaaa, v22
    v_add_u32 v{IDX}, 0x4444, v22
    v_mov_b32 v{SXX}, 0
    v_mov_b32 v{SXX+1}, 0
    s_mov_b32 s{sT3}, 0xffff0000
    """)
    FR = 24
    AQ, AK, AV = 56, 72, 88
    for r in range(8):
        a(f"v_mov_b32 v{S0+r}, 0")

    def reads(n):
        c, j = n >> 2, n & 3
        slot = c & 3
        hi, so = slot >> 1, (slot & 1) * 32768
        b = FR + 16 * (n & 1)
        r = [(f"ds_read_b128 {vr(b,4)}, v{6 + j + 4*hi} offset:{so}", f"r{n}")]
        for seg in range(3):
            for e in range(2):
                r.append((f"ds_read_b64_tr_b16 {vr(b + 4 + 4*seg + 2*e, 2)}, v{14 + hi} offset:{so + 8192 + j*6144 + seg*1024 + e*256}", f"r{n}"))
        return r

    def step(n, rd, side):
        b = FR + 16 * (n & 1)
        xf = vr(b, 4)
        c = lambda acc: "0" if n == 0 else vr(acc, 16)
        sq = []
        for i in range(4):
            sq.append(f"v_lshlrev_b32 v{TMP+2*i}, 16, v{b+i}")
            sq.append(f"v_and_b32 v{TMP+2*i+1}, s{sT3}, v{b+i}")
        for i in range(8):
            sq.append(f"v_fmac_f32 v{SXX + (i & 1)}, v{TMP+i}, v{TMP+i}")
        def put(rs, vs):
            for t, g in rs:
                a(t, tag=g)
            for t in vs:
                a(t)
        a(f"v_mfma_f32_32x32x16_bf16 {vr(AQ,16)}, {vr(b+4,4)}, {xf}, {c(AQ)}")
        put(rd[0:3], sq[0:3])
        a(f"v_mfma_f32_32x32x16_bf16 {vr(AK,16)}, {vr(b+8,4)}, {xf}, {c(AK)}")
        put(rd[3:5], sq[3:7])
        a(f"v_mfma_f32_32x32x16_bf16 {vr(AV,16)}, {xf}, {vr(b+12,4)}, {c(AV)}")
        put(rd[5:7], sq[7:11])
        a(f"v_smfmac_f32_16x16x64_bf16 {vr(S0,4)}, {vr(SEL,4)}, {vr(b,8)}, v{IDX}")
        put([], sq[11:14])
        a(f"v_smfmac_f32_16x16x64_bf16 {vr(S1,4)}, {vr(SEL,4)}, {vr(b+8,8)}, v{IDX}")
        if side:
            side()
        put([], sq[14:16])

    a.wait("c0")
    a("s_barrier")
    st.mark(a, "p1_c0")
    for t, g in reads(0):
        a(t, tag=g)
    for n in range(32):
        m = n + 1
        side = None
        if m < 32:
            c, j = m >> 2, m & 3
            if j == 0:
                a.wait(f"c{c}", f"r{n}")
                a("s_barrier")
            if 1 <= c <= 4:
                side = dma(c + 3)[j]
        step(n, reads(m) if m < 32 else [], side)
    st.mark(a, "p1_loop")

    MU, RS, RQ = 22, 18, 24
    a(f"""
    s_lshl_b32 s{sT}, s{sw}, 11
    s_add_u32 s{sT}, s{sT}, {L_T}
    v_add_f32 v{SXX}, v{SXX}, v{SXX+1}
    v_lshl_add_u32 v3, v1, 2, s{sT}
    v_and_b32 v2, 31, v1
    v_lshl_add_u32 v2, v2, 2, s{sT}
    v_mov_b32 v25, v{SXX}
    v_lshrrev_b32 v4, 5, v1
    v_lshl_add_u32 v4, v4, 4, s{sT}
    v_add_f32 v{S0}, v{S0}, v{S0+1}
    v_add_f32 v{S1}, v{S1}, v{S1+1}
    v_permlane32_swap_b32 v25, v{SXX}
    ds_write_b32 v3, v{S0} offset:0
    ds_write_b32 v3, v{S1} offset:256
    v_mov_b32 v26, v{S1}
    """)
    B0, B1_, B2_, B3 = 112, 128, 144, 160
    for q in range(4):
        a(f"ds_read_b128 {vr(B0+4*q,4)}, v4 offset:{128 + 32*q}")
    for q in range(4):
        a(f"ds_read_b128 {vr(B1_+4*q,4)}, v4 offset:{256 + 32*q}")
    a(f"""
    v_permlane32_swap_b32 v26, v{S0}
    v_add_f32 v{SXX}, v{SXX}, v25
    v_mov_b32 v27, v26
    v_mov_b32 v28, v{S0}
    v_mul_f32 v{SXX}, {f32(1.0/D)}, v{SXX}
    v_permlane32_swap_b32 v27, v26
    v_permlane32_swap_b32 v28, v{S0}
    v_mul_f32 v{MU}, {f32(-1.0/D)}, v26
    v_mov_b32 v26, v28
    v_fma_f32 v{SXX}, -v{MU}, v{MU}, v{SXX}
    v_max_f32 v{SXX}, 0, v{SXX}
    v_add_f32 v{SXX}, {f32(EPS)}, v{SXX}
    v_rsq_f32 v{RS}, v{SXX}
    ds_write_b32 v2, v{MU} offset:512
    ds_write_b32 v2, v{RS} offset:640
    v_mul_f32 v{RQ}, {f32(0.25*LOG2E)}, v{RS}
    """)
    for q in range(4):
        a(f"ds_read_b128 {vr(B2_+4*q,4)}, v4 offset:{512 + 32*q}")
    for q in range(4):
        a(f"ds_read_b128 {vr(B3+4*q,4)}, v4 offset:{640 + 32*q}")
    a(f"""
    s_lshl_b32 s{sT}, s{scg}, 1
    s_add_u32 s{sT}, s{sT}, s{shp}
    s_lshl_b32 s{sT2}, s{stb}, 1
    s_add_u32 s{sT2}, s{sT2}, s{stt}
    s_lshl_b32 s{sT3}, s{sT}, 6
    s_add_u32 s{sT3}, s{sT3}, s{sT2}
    s_lshl_b32 s{sT3}, s{sT3}, 7
    s_add_u32 s{sT3}, s{sT3}, {F1}
    s_lshl_b32 s{sT}, s{sT}, 17
    s_lshl_b32 s{sT2}, s{sT2}, 10
    s_add_u32 s{sT}, s{sT}, s{sT2}
    v_lshlrev_b32 v2, 4, v1
    v_and_b32 v6, 0x33, v1
    v_bfe_u32 v7, v1, 2, 1
    v_lshl_add_u32 v6, v7, 3, v6
    v_bfe_u32 v7, v1, 3, 1
    v_lshl_add_u32 v6, v7, 2, v6
    v_lshlrev_b32 v6, 4, v6
    v_and_b32 v7, 15, v1
    v_lshlrev_b32 v7, 4, v7
    v_lshrrev_b32 v8, 5, v1
    v_lshl_add_u32 v7, v8, 8, v7
    v_bfe_u32 v8, v1, 4, 1
    v_lshl_add_u32 v7, v8, 16, v7
    """)
    P = 28
    for (acc, bc, scale, base, addr) in ((AK, B1_, RS, WS_K, 6), (AQ, B0, RQ, WS_Q, 2)):
        for i in range(8):
            a(f"v_pk_fma_f32 {vr(acc+2*i,2)}, {vr(bc+2*i,2)}, {vr(MU,2)}, {vr(acc+2*i,2)} op_sel_hi:[1,0,1]")
        for i in range(8):
            a(f"v_pk_mul_f32 {vr(acc+2*i,2)}, {vr(acc+2*i,2)}, {vr(scale,2)} op_sel_hi:[1,0]")
        for i in range(8):
            a(f"v_cvt_pk_bf16_f32 v{P+i}, v{acc+2*i}, v{acc+2*i+1}")
        a(f"s_add_u32 s{sT2}, s{sT}, {base}")
        a(f"buffer_store_dwordx4 {vr(P,4)}, v{addr}, s[{WS}:{WS+3}], s{sT2} offen sc1", tag="st1")
        a(f"s_add_u32 s{sT2}, s{sT}, {base + 65536}")
        a(f"buffer_store_dwordx4 {vr(P+4,4)}, v{addr}, s[{WS}:{WS+3}], s{sT2} offen sc1", tag="st1")
        P += 8
    for i in range(8):
        a(f"v_pk_fma_f32 {vr(AV+2*i,2)}, {vr(B2_+2*i,2)}, v[26:27], {vr(AV+2*i,2)} op_sel_hi:[1,0,1]")
    for i in range(8):
        a(f"v_pk_mul_f32 {vr(AV+2*i,2)}, {vr(AV+2*i,2)}, {vr(B3+2*i,2)}")
    for i in range(8):
        a(f"v_cvt_pk_bf16_f32 v{P+i}, v{AV+2*i}, v{AV+2*i+1}")
    a(f"s_add_u32 s{sT2}, s{sT}, {WS_V}")
    a(f"buffer_store_dwordx4 {vr(P,4)}, v7, s[{WS}:{WS+3}], s{sT2} offen sc1", tag="st1")
    a(f"buffer_store_dwordx4 {vr(P+4,4)}, v7, s[{WS}:{WS+3}], s{sT2} offen offset:512 sc1", tag="st1")
    st.mark(a, "p1_stored")


def stage2(a, st, slow):
    shead, sqt, sSRC, sM0, sM1, sPASS, sIT, sWo, sMw, sP1, sP2, sQ = sA
    QF, IDX = [4, 8], 3
    AV = 12
    KR, VA, VB = [20, 24], [28, 32], [36, 40]
    OA = [44, 60]
    SB = [76, 92, 108, 124]
    WA, PA1, PA2, PD, FL = 140, 144, 145, 146, 148
    CM = [156, 172]
    KV = WQ
    a("s_barrier")
    a(f"""
    s_lshl_b32 s{shead}, s{sxcd}, 2
    s_and_b32 s{sT}, s{sloc}, 3
    s_add_u32 s{shead}, s{shead}, s{sT}
    s_lshr_b32 s{sqt}, s{sloc}, 2
    s_lshl_b32 s{sqt}, s{sqt}, 2
    s_add_u32 s{sqt}, s{sqt}, s{sw}
    s_lshl_b32 s{sSRC}, s{shead}, 16
    s_lshl_b32 s{sQ}, s{sqt}, 11
    s_add_u32 s{sQ}, s{sQ}, s{sSRC}
    s_lshr_b32 s{sT2}, s{sw}, 1
    s_lshl_b32 s{sT}, s{sT2}, 12
    s_add_u32 s{sSRC}, s{sSRC}, s{sT}
    s_bitcmp1_b32 s{sw}, 0
    s_cselect_b32 s{sM1}, {VGRP - 4096}, 0
    s_cselect_b32 s{sM0}, {L_KV_V}, {L_KV_K}
    s_cselect_b32 s{sT}, {WS_V - WS_K}, 0
    s_add_u32 s{sM1}, s{sM1}, 4096
    s_add_u32 s{sSRC}, s{sSRC}, s{sT}
    s_add_u32 s{sSRC}, s{sSRC}, {WS_K}
    s_mov_b32 s{KV}, s{WS}
    s_mov_b32 s{KV+1}, s{WS+1}
    s_or_b32 s{KV+2}, s{sSRC}, 0xffff
    s_add_u32 s{KV+2}, s{KV+2}, 1
    s_mul_i32 s{sT2}, s{sT2}, s{sM1}
    s_add_u32 s{sM0}, s{sM0}, s{sT2}
    s_lshl_b32 s{sM1}, s{sM1}, 1
    s_add_u32 s{sM1}, s{sM1}, s{sM0}
    v_and_b32 v20, 1, v1
    v_cmp_eq_u32 vcc, 0, v20
    v_mov_b32 v21, 0x3f803f80
    v_cndmask_b32 v24, 0, v21, vcc
    v_bfe_u32 v21, v1, 1, 2
    v_mul_u32_u24 v21, {VGRP}, v21
    v_lshl_add_u32 v21, v20, 4, v21
    v_mov_b32 v25, v24
    v_mov_b32 v26, v24
    v_mov_b32 v27, v24
    """)
    a(f"ds_write_b128 v21, v[24:27] offset:{L_KV_V + 4096}", tag="ones")
    signal(a, sT3, ["st1"], 22)
    st.mark(a, "p1_sig")
    a(f"""
    v_and_b32 v20, 15, v1
    v_lshlrev_b32 v20, 4, v20
    v_lshrrev_b32 v21, 5, v1
    v_lshl_add_u32 v20, v21, 8, v20
    v_add_u32 v20, {L_KV_V}, v20
    v_and_b32 v21, 11, v1
    v_min_u32 v21, 1, v21
    v_lshlrev_b32 v21, 4, v21
    v_add_u32 v21, {L_KV_V + 4096}, v21
    v_and_b32 v22, 16, v1
    v_cmp_eq_u32 vcc, 0, v22
    v_mov_b32 v{IDX}, 0xdddd
    s_mov_b32 s{sPASS}, 0
    """)
    for i in range(8):
        a(f"v_cndmask_b32 v{AV+i}, v21, v20, vcc")
        if i < 7:
            a("v_add_u32 v20, 512, v20")
    for i in range(32):
        a(f"v_mov_b32 v{OA[0]+i}, 0")
    for i in range(8):
        a(f"v_mov_b32 v{SB[3]+8+i}, 0")
    for i in range(4):
        a(f"v_mov_b32 v{VB[1]+i}, 0")
    a(f"""
    s_lshl_b32 s{sMw}, s{sw}, 12
    s_add_u32 s{sMw}, s{sMw}, {L_WO}
    s_lshl_b32 s{sWo}, s{sw}, 15
    s_and_b32 s{sT}, s{sloc}, 7
    s_lshl_b32 s{sT}, s{sT}, 7
    s_add_u32 s{sWo}, s{sWo}, s{sT}
    v_bfe_u32 v{WA}, v1, 2, 3
    v_lshlrev_b32 v{WA}, 10, v{WA}
    v_lshrrev_b32 v20, 5, v1
    v_lshl_add_u32 v{WA}, v20, 6, v{WA}
    v_and_b32 v20, 3, v1
    v_lshl_add_u32 v{WA}, v20, 4, v{WA}
    v_add_u32 v{WA+1}, 7168, v{WA}
    v_add_u32 v{WA+2}, {2*7168}, v{WA}
    v_add_u32 v{WA+3}, {3*7168}, v{WA}
    s_lshl_b32 s{sP1}, s{sloc}, 2
    s_add_u32 s{sP1}, s{sP1}, s{sw}
    s_and_b32 s{sP2}, s{sxcd}, 1
    s_lshl_b32 s{sP2}, s{sP2}, 7
    s_add_u32 s{sP2}, s{sP2}, s{sP1}
    s_mul_i32 s{sP1}, s{sP1}, {16 * F * 2}
    s_mul_i32 s{sP2}, s{sP2}, {7 * S * 2}
    s_lshr_b32 s{sT}, s{sxcd}, 1
    s_mul_i32 s{sT2}, s{sT}, 896
    s_add_u32 s{sP1}, s{sP1}, s{sT2}
    s_lshl_b32 s{sT}, s{sT}, 10
    s_add_u32 s{sP2}, s{sP2}, s{sT}
    v_lshrrev_b32 v{PA1}, 4, v1
    v_mul_u32_u24 v{PA1}, {F * 2}, v{PA1}
    v_bfe_u32 v20, v1, 1, 3
    v_min_u32 v20, 6, v20
    v_lshl_add_u32 v{PA1}, v20, 7, v{PA1}
    v_lshrrev_b32 v{PA2}, 3, v1
    v_min_u32 v{PA2}, 6, v{PA2}
    v_lshlrev_b32 v{PA2}, 12, v{PA2}
    v_bfe_u32 v20, v1, 2, 1
    v_lshl_add_u32 v{PA2}, v20, 7, v{PA2}
    v_lshlrev_b32 v{FL}, 7, v1
    s_lshr_b32 s{sT}, s{shead}, 1
    s_lshl_b32 s{sT}, s{sT}, 13
    s_add_u32 s{sT}, s{sT}, {F1}
    s_mov_b32 m0, s{sM0}
    s_mov_b32 s{sIT}, 0
    """)
    poll(a, FL, sT, FL + 2)
    st.mark(a, "p2_seen")

    def kv_dma(i, tag):
        a(f"buffer_load_dwordx4 v2, s[{KV}:{KV+3}], s{sSRC} offen offset:{i*1024} sc1 lds", tag=tag)

    def kv_head(par):
        a(f"s_mov_b32 m0, s{(sM0, sM1)[par]}")
        a(f"s_add_u32 s{sSRC}, s{sSRC}, 8192")

    for i in range(4):
        kv_dma(i, "kv0")
    a(f"buffer_load_dwordx4 {vr(QF[0],4)}, v2, s[{WS}:{WS+3}], s{sQ} offen sc1")
    a(f"buffer_load_dwordx4 {vr(QF[1],4)}, v2, s[{WS}:{WS+3}], s{sQ} offen offset:1024 sc1")
    kv_head(1)
    for i in range(2):
        kv_dma(i, "kv1")

    def rdK(t):
        a(f"ds_read_b128 {vr(KR[t&1],4)}, v2 offset:{L_KV_K + (t & 15)*1024}", tag="rd")

    def rdV(t, j):
        a(f"ds_read_b128 {vr((VA, VB)[j][t&1],4)}, v{AV + 2*(t&3) + j} offset:{((t >> 2) & 3) * VGRP}", tag="rd")

    def qk(u):
        a(f"v_mfma_f32_32x32x16_bf16 {vr(SB[u&3],16)}, {vr(KR[(u>>1)&1],4)}, {vr(QF[u&1],4)}, 0")

    def pv(u, j):
        a(f"v_smfmac_f32_32x32x32_bf16 {vr(OA[u&1],16)}, {vr((VA, VB)[j][(u>>1)&1],4)}, {vr(SB[u&3]+8*j,8)}, v{IDX}")

    side = {}
    def at(u, slot, f):
        side.setdefault((u & 31, slot), []).append(f)
    for par in range(2):
        u0 = 16 * par + 14
        at(u0, 1, lambda par=par: kv_head(par))
        for i in range(4):
            at(u0 + i, 2, lambda i=i, par=par: kv_dma(i, f"kv{par}"))
    def wo_head():
        a(f"s_mov_b32 m0, s{sMw}")
        a(f"s_add_u32 s{sMw}, s{sMw}, 16384")
    at(4, 1, wo_head)
    for i in range(4):
        at(4 + 2*i, 2, lambda i=i: a(f"buffer_load_dwordx4 v{WA+i}, s[{WO}:{WO+3}], s{sWo} offen offset:{i*1024} lds", tag="wo"))
    at(12, 1, lambda: a(f"s_add_u32 s{sWo}, s{sWo}, 131072"))
    at(20, 2, lambda: a(f"buffer_load_dword v{PD}, v{PA1}, s[{W1}:{W1+3}], s{sP1} offen"))
    at(22, 1, lambda: a(f"s_add_u32 s{sP1}, s{sP1}, {4 * F * 2}"))
    at(24, 2, lambda: a(f"buffer_load_dword v{PD+1}, v{PA2}, s[{W2}:{W2+3}], s{sP2} offen {OPT['w2nt']}"))
    at(26, 1, lambda: a(f"s_add_u32 s{sP2}, s{sP2}, 256"))
    at(28, 1, lambda: a(f"s_add_u32 s{sIT}, s{sIT}, 1"))

    a.wait("kv0", "ones")
    a("s_barrier")
    st.mark(a, "p2_go")
    rdK(0)
    rdV(0, 0)
    rdV(0, 1)
    qk(0)
    a("s_waitcnt vmcnt(2)")
    a("s_nop 10")
    a("L_attn:")
    for u in range(32):
        t, q = u >> 1, u & 1
        s = SB[u & 3]
        for i in range(16):
            a(f"v_exp_f32 v{s+i}, v{s+i}")
            if i == 0:
                qk(u + 1)
                if u % 16 == 14:
                    a.wait("rd", f"kv{1 - (u >> 4)}")
                    a("s_barrier")
                if q == 0:
                    a.wait("rd")
                    rdK(t + 1)
                else:
                    rdV(t + 1, 0)
            if i == 5:
                pv(u - 1, 1)
                if q == 1:
                    rdV(t + 1, 1)
                for f in side.get((u, 1), ()):
                    f()
            if i == 10:
                pv(u, 0)
                if q == 0:
                    a.wait("rd")
                for f in side.get((u, 2), ()):
                    f()
                if u == 31:
                    a(f"s_cmp_lt_u32 s{sIT}, 4")
    a("s_cbranch_scc1 L_attn")
    pv(31, 1)
    st.mark(a, "p2_loop")
    T = 20
    a(f"""
    L_attn_check:
    v_mov_b32 v{T+8}, {f32(2.0**-40)}
    v_mov_b32 v{T+9}, {f32(2.0**40)}
    v_mov_b32 v{T+10}, {f32(2.0**120)}
    s_lshl_b32 s{sT}, s{sqt}, 16
    s_lshl_b32 s{sT2}, s{shead}, 10
    s_add_u32 s{sT}, s{sT}, s{sT2}
    s_add_u32 s{sT}, s{sT}, {WS_O}
    s_add_u32 s{sT2}, s{sT}, 32768
    s_lshl_b32 s{sT3}, s{sqt}, 5
    s_add_u32 s{sT3}, s{sT3}, s{shead}
    s_lshl_b32 s{sT3}, s{sT3}, 7
    s_add_u32 s{sT3}, s{sT3}, {F2}
    s_mov_b64 s[62:63], 0
    """)
    for q in range(2):
        o = OA[q]
        a(f"""
        v_rcp_f32 v{T+2*q}, v{o+8}
        v_add_f32 v{T+4}, |v{o}|, |v{o+1}|
        v_add_f32 v{T+5}, |v{o+2}|, |v{o+3}|
        v_add_f32 v{T+6}, |v{o+4}|, |v{o+5}|
        v_add_f32 v{T+7}, |v{o+6}|, |v{o+7}|
        v_cmp_nge_f32 vcc, v{o+8}, v{T+8}
        v_add_f32 v{T+4}, v{T+4}, v{T+5}
        s_or_b64 s[62:63], s[62:63], vcc
        v_cmp_nle_f32 vcc, v{o+8}, v{T+9}
        v_add_f32 v{T+6}, v{T+6}, v{T+7}
        s_or_b64 s[62:63], s[62:63], vcc
        v_add_f32 v{T+4}, v{T+4}, v{T+6}
        v_cmp_nle_f32 vcc, v{T+4}, v{T+10}
        s_or_b64 s[62:63], s[62:63], vcc
        """)
    a(f"""
    s_cselect_b32 s{sIT}, 1, 0
    s_cmp_gt_u32 s{sIT}, s{sPASS}
    s_cbranch_scc1 L_attn_slow
    """)
    for q in range(2):
        o = OA[q]
        for i in range(4):
            a(f"v_pk_mul_f32 {vr(o+2*i,2)}, {vr(o+2*i,2)}, {vr(T+2*q,2)} op_sel_hi:[1,0]")
        for i in range(4):
            a(f"v_cvt_pk_bf16_f32 v{T+4+4*q+i}, v{o+2*i}, v{o+2*i+1}")
        a(f"buffer_store_dwordx4 {vr(T+4+4*q,4)}, v2, s[{WS}:{WS+3}], s{(sT, sT2)[q]} offen sc1", tag="st2")

    b = slow
    b(f"""
    L_attn_slow:
    s_mov_b32 s{sPASS}, 1
    s_lshl_b32 s{sT}, s{shead}, 16
    s_add_u32 s{sT}, s{sT}, {WS_K}
    s_add_u32 s{sT2}, s{sT}, 65536
    v_mov_b32 v29, 0xff800000
    v_mov_b32 v30, 0xff800000
    L_attn_max:
    buffer_load_dwordx4 {vr(KR[0],4)}, v2, s[{WS}:{WS+3}], s{sT} offen sc1
    v_mfma_f32_32x32x16_bf16 {vr(SB[0],16)}, {vr(KR[0],4)}, {vr(QF[0],4)}, 0
    v_mfma_f32_32x32x16_bf16 {vr(SB[1],16)}, {vr(KR[0],4)}, {vr(QF[1],4)}, 0
    """)
    for q in range(2):
        for i in range(8):
            b(f"v_max3_f32 v{29+q}, v{SB[q]+2*i}, v{SB[q]+2*i+1}, v{29+q}")
    b(f"""
    s_add_u32 s{sT}, s{sT}, 1024
    s_cmp_lt_u32 s{sT}, s{sT2}
    s_cbranch_scc1 L_attn_max
    v_mov_b32 v31, v29
    v_mov_b32 v32, v30
    v_permlane32_swap_b32 v31, v29
    v_permlane32_swap_b32 v32, v30
    v_max_f32 v29, v29, v31
    v_max_f32 v30, v30, v32
    """)
    for q in range(2):
        for i in range(16):
            b(f"v_sub_f32 v{CM[q]+i}, 0, v{29+q}")
    for i in range(32):
        b(f"v_mov_b32 v{OA[0]+i}, 0")
    for i in range(4):
        b(f"v_mov_b32 v{VA[0]+i}, 0x3f803f80")
        b(f"v_mov_b32 v{VB[0]+i}, 0x3f803f80")
    b(f"""
    v_add_u32 v{AV}, {WS_V - WS_K - L_KV_V}, v{AV}
    s_sub_u32 s{sT}, s{sT}, 65536
    s_mov_b32 s62, 0xffff
    s_mov_b32 s63, 0xffff
    L_attn_redo:
    buffer_load_dwordx4 {vr(KR[0],4)}, v2, s[{WS}:{WS+3}], s{sT} offen sc1
    s_mov_b64 exec, s[62:63]
    buffer_load_dwordx4 {vr(VA[0],4)}, v{AV}, s[{WS}:{WS+3}], s{sT} offen sc1
    buffer_load_dwordx4 {vr(VB[0],4)}, v{AV}, s[{WS}:{WS+3}], s{sT} offen offset:512 sc1
    s_mov_b64 exec, -1
    """)
    for q in range(2):
        b(f"v_mfma_f32_32x32x16_bf16 {vr(SB[q],16)}, {vr(KR[0],4)}, {vr(QF[q],4)}, {vr(CM[q],16)}")
    for q in range(2):
        for r in range(16):
            b(f"v_exp_f32 v{SB[q]+r}, v{SB[q]+r}")
        b(f"v_smfmac_f32_32x32x32_bf16 {vr(OA[q],16)}, {vr(VA[0],4)}, {vr(SB[q],8)}, v{IDX}")
        b(f"v_smfmac_f32_32x32x32_bf16 {vr(OA[q],16)}, {vr(VB[0],4)}, {vr(SB[q]+8,8)}, v{IDX}")
    b(f"""
    s_add_u32 s{sT}, s{sT}, 1024
    s_cmp_lt_u32 s{sT}, s{sT2}
    s_cbranch_scc1 L_attn_redo
    s_branch L_attn_check
    """)


class WStream:
    def __init__(self, a, srd, row, soff, va, vrd, hs_es, name):
        self.a, self.srd, self.row, self.soff, self.va, self.vrd, self.name = a, srd, row, soff, va, vrd, name
        self.es = hs_es[1]

    def dma(self, k, smem, lds_off):
        a = self.a
        a(f"s_add_u32 m0, s{smem}, {lds_off}")
        if k:
            a(f"s_add_u32 s{self.soff}, s{self.soff}, {16 * self.row}")
        a(f"buffer_load_dwordx4 v{self.va}, s[{self.srd}:{self.srd+3}], s{self.soff} offen lds", tag=f"{self.name}{k}")
        a(f"buffer_load_dwordx4 v{self.va+1}, s[{self.srd}:{self.srd+3}], s{self.soff} offen offset:1024 lds", tag=f"{self.name}{k}")

    def read(self, k, vrd, lds_off):
        a = self.a
        a.wait(f"{self.name}{k}")
        for nt in range(2):
            for e in range(2):
                a(f"ds_read_b64_tr_b16 {ar(8*k + 4*nt + 2*e, 2)}, v{vrd} offset:{lds_off + nt*512 + e*self.es}", tag=f"{self.name}r")


def wstream_addr(a, row, va, vrd, hs):
    a(f"""
    v_bfe_u32 v{va}, v1, 2, 3
    v_mul_u32_u24 v{va}, {row}, v{va}
    v_lshrrev_b32 v{vrd}, 5, v1
    v_lshl_add_u32 v{va}, v{vrd}, 6, v{va}
    v_and_b32 v{va+1}, 3, v1
    v_lshl_add_u32 v{va}, v{va+1}, 4, v{va}
    v_mul_u32_u24 v{vrd}, {hs}, v{vrd}
    v_lshl_add_u32 v{vrd}, v{va+1}, 3, v{vrd}
    v_bfe_u32 v{va+1}, v1, 2, 2
    v_lshl_add_u32 v{vrd}, v{va+1}, 6, v{vrd}
    v_bfe_u32 v{va+1}, v1, 4, 1
    v_lshl_add_u32 v{vrd}, v{va+1}, 5, v{vrd}
    v_add_u32 v{va+1}, {8 * row - 1024}, v{va}
    """)


sDB, sNB, sWoff, sStg = 58, 59, 60, 61
VWA, VWR = 244, 246


def stage3(a, st):
    stb, sdb, stt, sdt, sO, sMo, sST, sDT = sA[:8]
    WF = 112
    a(f"""
    s_lshl_b32 s{stb}, s{sxcd}, 2
    s_lshr_b32 s{sT}, s{sloc}, 3
    s_add_u32 s{stb}, s{stb}, s{sT}
    s_and_b32 s{sdb}, s{sloc}, 7
    s_and_b32 s{stt}, s{sw}, 1
    s_lshr_b32 s{sdt}, s{sw}, 1
    s_lshl_b32 s{sT}, s{stb}, 16
    s_lshl_b32 s{sT2}, s{sw}, 14
    s_add_u32 s{sT}, s{sT}, s{sT2}
    s_lshl_b32 s{sT2}, s{sdb}, 7
    s_add_u32 s{sT}, s{sT}, s{sT2}
    v_lshrrev_b32 v4, 3, v1
    v_lshlrev_b32 v4, 10, v4
    v_lshrrev_b32 v5, 4, v1
    v_and_b32 v6, 7, v1
    v_xor_b32 v5, v5, v6
    v_lshl_add_u32 v3, v5, 4, v4
    v_xor_b32 v5, 4, v5
    v_lshl_add_u32 v4, v5, 4, v4
    v_add_u32 v4, {8192 - 1024}, v4
    s_lshl_b32 s{sT2}, s{sw}, 11
    s_add_u32 m0, s{sT2}, {L_X}
    """)
    a(f"buffer_load_dwordx4 v3, s[{X}:{X+3}], s{sT} offen lds", tag="xt")
    a(f"buffer_load_dwordx4 v4, s[{X}:{X+3}], s{sT} offen offset:1024 lds", tag="xt")
    a(f"""
    s_lshl_b32 s{sT}, s{stt}, 15
    v_add_u32 v3, s{sT}, v2
    s_lshl_b32 s{sT}, s{sdt}, 9
    s_add_u32 s{sT}, s{sT}, {L_WO}
    v_lshrrev_b32 v7, 5, v1
    v_lshlrev_b32 v4, 8, v7
    v_bfe_u32 v8, v1, 2, 2
    v_lshl_add_u32 v4, v8, 6, v4
    v_bfe_u32 v8, v1, 4, 1
    v_lshlrev_b32 v9, 5, v8
    v_and_b32 v8, 1, v1
    v_lshl_add_u32 v9, v8, 4, v9
    v_bfe_u32 v8, v1, 1, 1
    v_lshl_add_u32 v9, v8, 3, v9
    v_add3_u32 v4, v4, v9, s{sT}
    """)
    signal(a, sT3, ["st2", "wo", "kv0", "kv1"], 22)
    st.mark(a, "p2_sig")
    a.wait("rd")
    a("s_barrier")
    for n in range(32):
        a(f"ds_read_b64_tr_b16 {vr(WF + 4*n, 2)}, v4 offset:{n*2048}", tag="wor")
        a(f"ds_read_b64_tr_b16 {vr(WF + 4*n + 2, 2)}, v4 offset:{n*2048 + 1024}", tag="wor")
    a(f"""
    s_lshl_b32 s{sT}, s{stt}, 12
    s_add_u32 s{sT}, s{sT}, {L_X}
    s_lshl_b32 s{sT2}, s{sdt}, 6
    v_and_b32 v10, 31, v1
    v_bfe_u32 v8, v1, 1, 3
    v_xor_b32 v8, v8, v7
    v_lshlrev_b32 v8, 4, v8
    v_xor_b32 v8, s{sT2}, v8
    v_lshl_add_u32 v8, v10, 7, v8
    v_add_u32 v5, s{sT}, v8
    v_xor_b32 v6, 32, v5
    s_lshl_b32 s{sMo}, s{stt}, 15
    s_lshl_b32 s{sT}, s{sdt}, 12
    s_add_u32 s{sMo}, s{sMo}, s{sT}
    s_lshl_b32 s{sO}, s{stb}, 16
    s_add_u32 s{sO}, s{sO}, s{sMo}
    s_add_u32 s{sO}, s{sO}, {WS_O}
    s_and_b32 s{sDB}, s{sxcd}, 1
    s_lshl_b32 s{sDB}, s{sDB}, 2
    s_and_b32 s{sT}, s{sloc}, 3
    s_add_u32 s{sDB}, s{sDB}, s{sT}
    s_lshr_b32 s{sT}, s{sxcd}, 1
    s_mul_i32 s{sNB}, s{sT}, 7
    s_lshr_b32 s{sT}, s{sloc}, 2
    s_min_u32 s{sT}, s{sT}, 6
    s_add_u32 s{sNB}, s{sNB}, s{sT}
    s_mul_i32 s{sWoff}, s{sw}, {512 * F * 2}
    s_lshl_b32 s{sT}, s{sNB}, 7
    s_add_u32 s{sWoff}, s{sWoff}, s{sT}
    s_lshl_b32 s{sStg}, s{sw}, 14
    v_lshlrev_b32 v11, 7, v10
    s_lshl_b32 s{sT3}, s{stb}, 12
    s_add_u32 s{sT3}, s{sT3}, {F2}
    """)
    wstream_addr(a, F * 2, VWA, VWR, 1024)
    a(f"v_add_u32 v{VWR}, s{sStg}, v{VWR}")
    a(f"v_add_u32 v{VWR+1}, {L_WO}, v{VWR}")
    w1 = WStream(a, W1, F * 2, sWoff, VWA, VWR, (1024, 256), "w1_")
    a.wait("wor")
    a("s_barrier")
    for k in range(8):
        w1.dma(k, sStg, L_WO + k * 2048)
    poll(a, 11, sT3, 12)
    st.mark(a, "p3_seen")
    for c in range(4):
        a(f"s_add_u32 m0, s{sMo}, {L_O + c * 8192}")
        if c:
            a(f"s_add_u32 s{sO}, s{sO}, 8192")
        for i in range(4):
            a(f"buffer_load_dwordx4 v2, s[{WS}:{WS+3}], s{sO} offen offset:{i*1024} sc1 lds", tag=f"o{c}")
        for k in (2*c, 2*c + 1):
            w1.read(k, VWR + 1, k * 2048)
    l = a.label("L_notag")
    a(f"""
    s_or_b32 s{sT}, s2, s{sw}
    s_cbranch_scc1 {l}
    s_mov_b32 s{sT}, {WS_NONCE}
    v_mov_b32 v12, s{sNON}
    v_mov_b32 v13, s{sNON+1}
    buffer_store_dwordx2 v[12:13], off, s[{WS}:{WS+3}], s{sT} sc1
    {l}:
    """)
    FR, NB = 16, 4
    ACC = 48
    XF = 64
    LAG = 3
    for n in range(32 + LAG):
        if n < 32:
            if n % 8 == 0:
                a.wait(f"o{n//8}", *(["xt"] if n == 0 else []))
                a("s_barrier")
            a(f"ds_read_b128 {vr(FR + 4*(n % NB),4)}, v3 offset:{L_O + n*1024}", tag="or")
        if n == 4:
            a(f"ds_read_b128 {vr(XF,4)}, v5")
            a(f"ds_read_b128 {vr(XF+4,4)}, v6")
        if n >= LAG:
            m = n - LAG
            a(f"v_mfma_f32_32x32x16_bf16 {vr(ACC,16)}, {vr(WF + 4*m,4)}, {vr(FR + 4*(m % NB),4)}, {'0' if m == 0 else vr(ACC,16)}")
    st.mark(a, "p3_loop")
    HP, T = 72, 16
    for i in range(8):
        a(f"v_lshlrev_b32 v{T+2*i}, 16, v{XF+i}")
        a(f"v_and_b32 v{T+2*i+1}, 0xffff0000, v{XF+i}")
    a(f"""
    s_lshl_b32 s{sST}, s{stb}, 1
    s_add_u32 s{sST}, s{sST}, s{stt}
    s_lshl_b32 s{sDT}, s{sdb}, 1
    s_add_u32 s{sDT}, s{sDT}, s{sdt}
    s_lshl_b32 s{sT}, s{sST}, 12
    s_add_u32 s{sT}, s{sT}, {WS_ST}
    s_lshl_b32 s{sT2}, s{sDT}, 8
    s_add_u32 s{sT2}, s{sT2}, s{sT}
    v_lshlrev_b32 v11, 3, v10
    """)
    for i in range(8):
        a(f"v_pk_add_f32 {vr(ACC+2*i,2)}, {vr(ACC+2*i,2)}, {vr(T+2*i,2)}")
    a(f"""
    v_pk_add_f32 {vr(T,2)}, {vr(ACC,2)}, {vr(ACC+2,2)}
    v_pk_add_f32 {vr(T+2,2)}, {vr(ACC+4,2)}, {vr(ACC+6,2)}
    v_pk_add_f32 {vr(T+4,2)}, {vr(ACC+8,2)}, {vr(ACC+10,2)}
    v_pk_add_f32 {vr(T+6,2)}, {vr(ACC+12,2)}, {vr(ACC+14,2)}
    v_pk_add_f32 {vr(T,2)}, {vr(T,2)}, {vr(T+2,2)}
    v_pk_add_f32 {vr(T+4,2)}, {vr(T+4,2)}, {vr(T+6,2)}
    v_pk_add_f32 {vr(T,2)}, {vr(T,2)}, {vr(T+4,2)}
    v_add_f32 v{T}, v{T}, v{T+1}
    v_mov_b32 v{T+1}, v{T}
    v_permlane32_swap_b32 v{T+1}, v{T}
    v_add_f32 v{T}, v{T}, v{T+1}
    v_mul_f32 v{T}, {f32(1.0/32)}, v{T}
    """)
    for i in range(8):
        a(f"v_pk_add_f32 {vr(T+2+2*i,2)}, {vr(ACC+2*i,2)}, {vr(T,2)} op_sel_hi:[1,0] neg_lo:[0,1] neg_hi:[0,1]")
    a(f"v_pk_mul_f32 {vr(T+18,2)}, {vr(T+2,2)}, {vr(T+2,2)}")
    a(f"v_pk_mul_f32 {vr(T+20,2)}, {vr(T+4,2)}, {vr(T+4,2)}")
    for i in range(2, 8):
        r = T + 18 + 2 * (i & 1)
        a(f"v_pk_fma_f32 {vr(r,2)}, {vr(T+2+2*i,2)}, {vr(T+2+2*i,2)}, {vr(r,2)}")
    a(f"""
    v_pk_add_f32 {vr(T+18,2)}, {vr(T+18,2)}, {vr(T+20,2)}
    v_add_f32 v{T+1}, v{T+18}, v{T+19}
    v_mov_b32 v{T+2}, v{T+1}
    v_permlane32_swap_b32 v{T+2}, v{T+1}
    v_add_f32 v{T+1}, v{T+1}, v{T+2}
    buffer_store_dwordx2 {vr(T,2)}, v11, s[{WS}:{WS+3}], s{sT2} offen sc1
    v_lshlrev_b32 v11, 3, v1
    """)
    for i in range(8):
        a(f"v_cvt_pk_bf16_f32 v{HP+i}, v{ACC+2*i}, v{ACC+2*i+1}")
    a(f"""
    s_lshl_b32 s{sO}, s{sST}, 15
    s_lshl_b32 s{sT2}, s{sDT}, 11
    s_add_u32 s{sO}, s{sO}, s{sT2}
    s_add_u32 s{sO}, s{sO}, {WS_H}
    """)
    a(f"buffer_store_dwordx4 {vr(HP,4)}, v2, s[{WS}:{WS+3}], s{sO} offen sc1", tag="st3")
    a(f"buffer_store_dwordx4 {vr(HP+4,4)}, v2, s[{WS}:{WS+3}], s{sO} offen offset:1024 sc1", tag="st3")
    a.wait("w1_r")
    for k in range(8, 16):
        w1.dma(k, sStg, L_WO + (k - 8) * 2048)
    a("s_barrier")
    P = 16
    a(f"""
    s_mov_b32 s{sCNT}, 0
    L_st_poll:
    """)
    for p in range(8):
        a(f"buffer_load_dwordx2 {vr(P+2*p,2)}, v11, s[{WS}:{WS+3}], s{sT} offen offset:{p*512} sc1")
    a(f"""
    v_max3_u32 v32, v{P}, v{P+1}, v{P+2}
    v_max3_u32 v33, v{P+3}, v{P+4}, v{P+5}
    v_max3_u32 v32, v{P+6}, v{P+7}, v32
    v_max3_u32 v33, v{P+8}, v{P+9}, v33
    v_max3_u32 v32, v{P+10}, v{P+11}, v32
    v_max3_u32 v33, v{P+12}, v{P+13}, v33
    v_max3_u32 v32, v{P+14}, v{P+15}, v32
    v_max_u32 v32, v32, v33
    v_cmp_eq_u32 vcc, -1, v32
    s_add_u32 s{sCNT}, s{sCNT}, 1
    s_cbranch_vccz L_st_got
    s_cmp_lt_u32 s{sCNT}, {SPIN}
    s_cbranch_scc1 L_st_poll
    L_st_got:
    """)
    st.mark(a, "p3_stats")
    a(f"""
    v_pk_add_f32 {vr(32,2)}, {vr(P,2)}, {vr(P+2,2)}
    v_pk_add_f32 {vr(34,2)}, {vr(P+4,2)}, {vr(P+6,2)}
    v_pk_add_f32 {vr(36,2)}, {vr(P+8,2)}, {vr(P+10,2)}
    v_pk_add_f32 {vr(38,2)}, {vr(P+12,2)}, {vr(P+14,2)}
    v_pk_add_f32 {vr(32,2)}, {vr(32,2)}, {vr(34,2)}
    v_pk_add_f32 {vr(36,2)}, {vr(36,2)}, {vr(38,2)}
    v_pk_add_f32 {vr(32,2)}, {vr(32,2)}, {vr(36,2)}
    v_mov_b32 v34, v32
    v_permlane32_swap_b32 v34, v32
    v_add_f32 v32, v32, v34
    v_mul_f32 v32, {f32(1.0/16)}, v32
    """)
    for p in range(8):
        a(f"v_sub_f32 v{P+2*p}, v{P+2*p}, v32")
    a(f"v_mul_f32 v34, v{P}, v{P}")
    a(f"v_mul_f32 v35, v{P+2}, v{P+2}")
    for p in range(2, 8):
        a(f"v_fmac_f32 v{34 + (p & 1)}, v{P+2*p}, v{P+2*p}")
    a(f"""
    v_add_f32 v34, v34, v35
    v_fmac_f32 v33, {f32(32.0)}, v34
    v_mov_b32 v34, v33
    v_permlane32_swap_b32 v34, v33
    v_add_f32 v33, v33, v34
    v_mul_f32 v33, {f32(1.0/D)}, v33
    v_add_f32 v34, {f32(EPS)}, v33
    v_rcp_f32 v35, v34
    v_rsq_f32 v34, v34
    v_mul_f32 v35, v33, v35
    v_add_f32 v35, {f32(EPS)}, v35
    v_rsq_f32 v35, v35
    s_lshl_b32 s{sT}, s{sw}, 11
    s_add_u32 s{sT}, s{sT}, {L_T}
    v_mul_f32 v34, v34, v35
    """)
    for i in range(8):
        a(f"v_pk_add_f32 {vr(ACC+2*i,2)}, {vr(ACC+2*i,2)}, {vr(32,2)} op_sel_hi:[1,0] neg_lo:[0,1] neg_hi:[0,1]")
    for i in range(8):
        a(f"v_pk_mul_f32 {vr(ACC+2*i,2)}, {vr(ACC+2*i,2)}, {vr(34,2)} op_sel_hi:[1,0]")
    for i in range(8):
        a(f"v_cvt_pk_bf16_f32 v{P+i}, v{ACC+2*i}, v{ACC+2*i+1}")
    a(f"""
    v_lshlrev_b32 v12, 6, v10
    v_lshl_add_u32 v12, v7, 4, v12
    v_add_u32 v12, s{sT}, v12
    ds_write_b128 v12, {vr(P,4)}
    ds_write_b128 v12, {vr(P+4,4)} offset:32
    v_lshlrev_b32 v13, 9, v7
    v_bfe_u32 v8, v1, 2, 2
    v_lshl_add_u32 v13, v8, 6, v13
    v_add3_u32 v13, v13, v9, s{sT}
    ds_read_b64_tr_b16 {vr(P+8,2)}, v13
    ds_read_b64_tr_b16 {vr(P+10,2)}, v13 offset:256
    ds_read_b64_tr_b16 {vr(P+12,2)}, v13 offset:1024
    ds_read_b64_tr_b16 {vr(P+14,2)}, v13 offset:1280
    s_lshl_b32 s{sO}, s{sDT}, 17
    s_lshl_b32 s{sT2}, s{sST}, 11
    s_add_u32 s{sO}, s{sO}, s{sT2}
    s_add_u32 s{sO}, s{sO}, {WS_Z}
    s_lshl_b32 s{sT3}, s{sdb}, 5
    s_add_u32 s{sT3}, s{sT3}, s{stb}
    s_lshl_b32 s{sT3}, s{sT3}, 2
    s_add_u32 s{sT3}, s{sT3}, s{sw}
    s_lshl_b32 s{sT3}, s{sT3}, 7
    s_add_u32 s{sT3}, s{sT3}, {F3}
    """)
    a(f"buffer_store_dwordx4 {vr(P+8,4)}, v2, s[{WS}:{WS+3}], s{sO} offen sc1", tag="st3")
    a(f"buffer_store_dwordx4 {vr(P+12,4)}, v2, s[{WS}:{WS+3}], s{sO} offen offset:1024 sc1", tag="st3")
    for k in range(16, 21):
        w1.dma(k, sStg, L_O + (k - 16) * 2048)
    signal(a, sT3, ["st3"], 32)
    st.mark(a, "p3_sig")
    for k in range(21, 24):
        w1.dma(k, sStg, L_O + (k - 16) * 2048)
    for k in range(8, 16):
        w1.read(k, VWR + 1, (k - 8) * 2048)
    a.wait("w1_r")
    for k in range(24, 32):
        w1.dma(k, sStg, L_WO + (k - 24) * 2048)
    for k in range(16, 24):
        w1.read(k, VWR, L_O + (k - 16) * 2048)
    return w1


DEPTH = 12
AF = 96
ACC4 = 32
FIN, EP = 16, 200
L_RED = 114688


def gemm_loop(a, which, KS, sAoff, tail):
    def issue(k):
        s = k % DEPTH
        if k and k % 4 == 0:
            a(f"s_add_u32 s{sAoff}, s{sAoff}, 4096")
        a(f"buffer_load_dwordx4 {vr(AF + 8*s, 4)}, v2, s[{WS}:{WS+3}], s{sAoff} offen offset:{(k % 4) * 1024} sc1")
        return f"buffer_load_dwordx4 {vr(AF + 8*s + 4, 4)}, v3, s[{WS}:{WS+3}], s{sAoff} offen offset:{(k % 4) * 1024} sc1"

    def pre():
        for k in range(DEPTH - 1):
            a(issue(k))

    def loop():
        for k in range(KS):
            s = AF + 8 * (k % DEPTH)
            second = None
            for i, (dt, nt) in enumerate(((0, 0), (0, 1), (1, 0), (1, 1))):
                acc = vr(ACC4 + 16 * (2*nt + dt), 16)
                wf, af = ar(8*k + 4*nt, 4), vr(s + 4*dt, 4)
                A, B = (wf, af) if which == 1 else (af, wf)
                a(f"v_mfma_f32_32x32x16_bf16 {acc}, {A}, {B}, {'0' if k == 0 else acc}")
                if i == 0:
                    if k + DEPTH - 1 < KS:
                        second = issue(k + DEPTH - 1)
                    else:
                        tail(k + DEPTH - 1 - KS)
                if i == 2 and second:
                    a(second)
    return pre, loop


def reduce4(a):
    ends = a.label("L_red_done")
    labs = [a.label("L_red") for _ in range(4)]
    a(f"v_add_u32 v9, {L_RED}, v2")
    for w in range(1, 4):
        a(f"s_cmp_eq_u32 s{sw}, {w}")
        a(f"s_cbranch_scc1 {labs[w]}")
    for w in range(4):
        a(f"{labs[w]}:")
        for j in range(1, 4):
            t = (w + j) & 3
            for q in range(4):
                a(f"ds_write_b128 v9, {vr(ACC4 + 16*t + 4*q, 4)} offset:{(t*3 + j - 1) * 4096 + q * 1024}", tag="red")
        for i in range(8):
            a(f"v_pk_add_f32 {vr(FIN + 2*i, 2)}, {vr(FIN + 2*i, 2)}, {vr(ACC4 + 16*w + 2*i, 2)}")
        if w < 3:
            a(f"s_branch {ends}")
    a(f"{ends}:")
    a(f"s_mul_i32 s{sT}, s{sw}, 12288")
    a(f"v_add_u32 v9, s{sT}, v9")
    a.wait("red")
    a("s_barrier")
    for j in range(3):
        for q in range(4):
            a(f"ds_read_b128 {vr(ACC4 + 16*j + 4*q, 4)}, v9 offset:{j * 4096 + q * 1024}")
    for j in range(3):
        for i in range(8):
            a(f"v_pk_add_f32 {vr(FIN + 2*i, 2)}, {vr(FIN + 2*i, 2)}, {vr(ACC4 + 16*j + 2*i, 2)}")


def stage45(a, st, w1):
    sAoff, sNT, sDT, sSB, sW2, sStg2 = sA[:6]
    a(f"""
    s_mul_i32 s{sAoff}, s{sDB}, {2 * 131072}
    s_lshl_b32 s{sT}, s{sw}, 15
    s_add_u32 s{sAoff}, s{sAoff}, s{sT}
    s_add_u32 s{sAoff}, s{sAoff}, {WS_Z}
    v_add_u32 v3, 131072, v2
    s_lshr_b32 s{sT}, s{sw}, 1
    s_lshl_b32 s{sNT}, s{sNB}, 1
    s_add_u32 s{sNT}, s{sNT}, s{sT}
    s_and_b32 s{sT}, s{sw}, 1
    s_lshl_b32 s{sDT}, s{sDB}, 1
    s_add_u32 s{sDT}, s{sDT}, s{sT}
    s_lshr_b32 s{sT}, s{sxcd}, 1
    s_lshl_b32 s{sSB}, s{sT}, 3
    s_lshr_b32 s{sT}, s{sloc}, 2
    s_add_u32 s{sSB}, s{sSB}, s{sT}
    s_mul_i32 s{sW2}, s{sw}, {448 * S * 2}
    s_lshl_b32 s{sT}, s{sSB}, 7
    s_add_u32 s{sW2}, s{sW2}, s{sT}
    s_mul_i32 s{sStg2}, s{sw}, 28672
    s_lshl_b32 s{sT}, s{sNT}, 6
    v_lshlrev_b32 v10, 3, v7
    """)
    for q in range(4):
        a(f"buffer_load_dwordx2 {vr(EP + 2*q, 2)}, v10, s[{B1}:{B1+3}], s{sT} offen offset:{16*q}")
    a(f"""
    s_lshl_b32 s{sT3}, s{sDB}, 2
    s_add_u32 s{sT3}, s{sT3}, s{sw}
    s_lshl_b32 s{sT3}, s{sT3}, 12
    s_add_u32 s{sT3}, s{sT3}, {F3}
    v_and_b32 v11, 31, v1
    v_lshlrev_b32 v11, 7, v11
    """)
    for k in range(24, 32):
        w1.read(k, VWR + 1, (k - 24) * 2048)
    V2A, V2R = 248, 250
    wstream_addr(a, S * 2, V2A, V2R, 256)
    a(f"v_add_u32 v{V2R}, s{sStg2}, v{V2R}")
    w2 = WStream(a, W2, S * 2, sW2, V2A, V2R, (256, 1024), "w2_")
    for q in range(4):
        for e in range(2):
            a(f"v_lshlrev_b32 v{FIN + 4*q + 2*e}, 16, v{EP + 2*q + e}")
            a(f"v_and_b32 v{FIN + 4*q + 2*e + 1}, 0xffff0000, v{EP + 2*q + e}")
    a.wait("w1_r")
    a("s_barrier")
    a(f"s_lshr_b32 s{sT}, s{sloc}, 2")
    a(f"s_cmp_eq_u32 s{sT}, 7")
    a("s_cbranch_scc1 L_idle4")
    poll(a, 11, sT3, 12)
    st.mark(a, "p4_seen")
    def tail4(i):
        for k in ([i] if i < 8 else [2*i - 8, 2*i - 7]):
            w2.dma(k, sStg2, k * 2048)
    pre, loop = gemm_loop(a, 1, 32, sAoff, tail4)
    pre()
    loop()
    st.mark(a, "p4_loop")
    reduce4(a)
    T = 96
    c0 = -2.0 * 0.7978845608028654 * LOG2E
    a(f"v_mov_b32 v10, {f32(c0 * 0.044715)}")
    a(f"v_mov_b32 v12, {f32(c0)}")
    for i in range(8):
        a(f"v_pk_mul_f32 {vr(T + 2*i, 2)}, {vr(FIN + 2*i, 2)}, {vr(FIN + 2*i, 2)}")
    for i in range(8):
        a(f"v_pk_fma_f32 {vr(T + 2*i, 2)}, {vr(T + 2*i, 2)}, v[10:11], v[12:13] op_sel_hi:[1,0,0]")
    for i in range(8):
        a(f"v_pk_mul_f32 {vr(T + 2*i, 2)}, {vr(T + 2*i, 2)}, {vr(FIN + 2*i, 2)}")
    for i in range(16):
        a(f"v_exp_f32 v{T+i}, v{T+i}")
    for i in range(8):
        a(f"v_pk_add_f32 {vr(T + 2*i, 2)}, {vr(T + 2*i, 2)}, 1.0 op_sel_hi:[1,0]")
    for i in range(16):
        a(f"v_rcp_f32 v{T+i}, v{T+i}")
    for i in range(8):
        a(f"v_pk_mul_f32 {vr(FIN + 2*i, 2)}, {vr(FIN + 2*i, 2)}, {vr(T + 2*i, 2)}")
    for i in range(8):
        a(f"v_cvt_pk_bf16_f32 v{T+i}, v{FIN + 2*i}, v{FIN + 2*i + 1}")
    a(f"""
    s_mul_i32 s{sT}, s{sDT}, {112 * 1024}
    s_lshl_b32 s{sT2}, s{sNT}, 11
    s_add_u32 s{sT}, s{sT}, s{sT2}
    s_add_u32 s{sT}, s{sT}, {WS_G}
    s_mul_i32 s{sT3}, s{sDB}, 28
    s_add_u32 s{sT3}, s{sT3}, s{sNB}
    s_lshl_b32 s{sT3}, s{sT3}, 2
    s_add_u32 s{sT3}, s{sT3}, s{sw}
    s_lshl_b32 s{sT3}, s{sT3}, 7
    s_add_u32 s{sT3}, s{sT3}, {F4}
    """)
    a(f"buffer_store_dwordx4 {vr(T,4)}, v2, s[{WS}:{WS+3}], s{sT} offen sc1", tag="st4")
    a(f"buffer_store_dwordx4 {vr(T+4,4)}, v2, s[{WS}:{WS+3}], s{sT} offen offset:1024 sc1", tag="st4")
    for k in range(14):
        w2.read(k, V2R, k * 2048)
    signal(a, sT3, ["st4"], 12)
    a("s_branch L_join5")
    a(f"""
    L_idle4:
    s_and_b32 s{sT}, s{sloc}, 3
    s_lshl_b32 s{sT}, s{sT}, 2
    s_add_u32 s{sT}, s{sT}, s{sw}
    s_mul_i32 s{sT}, s{sT}, {112 * S * 2}
    s_lshr_b32 s{sT2}, s{sxcd}, 1
    s_lshl_b32 s{sT2}, s{sT2}, 10
    s_add_u32 s{sT}, s{sT}, s{sT2}
    v_lshrrev_b32 v12, 3, v1
    v_lshlrev_b32 v12, 12, v12
    v_and_b32 v13, 7, v1
    v_lshl_add_u32 v12, v13, 7, v12
    """)
    for i in range(OPT["idle_pf"]):
        a(f"buffer_load_dword v13, v12, s[{W2}:{W2+3}], s{sT} offen")
        a(f"s_add_u32 s{sT}, s{sT}, {8 * S * 2}")
    for k in range(14):
        w2.dma(k, sStg2, k * 2048)
    for k in range(14):
        w2.read(k, V2R, k * 2048)
    a("L_join5:")
    st.mark(a, "p4_sig")
    a.wait("w2_r")
    for k in range(14, 28):
        w2.dma(k, sStg2, (k - 14) * 2048)
    a(f"""
    s_mul_i32 s{sAoff}, s{sDB}, {2 * 114688}
    s_mul_i32 s{sT}, s{sw}, 28672
    s_add_u32 s{sAoff}, s{sAoff}, s{sT}
    s_add_u32 s{sAoff}, s{sAoff}, {WS_G}
    v_add_u32 v3, 114688, v2
    s_lshr_b32 s{sT}, s{sw}, 1
    s_lshl_b32 s{sNT}, s{sSB}, 1
    s_add_u32 s{sNT}, s{sNT}, s{sT}
    s_lshl_b32 s{sT3}, s{sDB}, 2
    s_add_u32 s{sT3}, s{sT3}, s{sw}
    s_mul_i32 s{sT3}, s{sT3}, {28 * 128}
    s_add_u32 s{sT3}, s{sT3}, {F4}
    v_min_u32 v11, 27, v1
    v_lshlrev_b32 v11, 7, v11
    s_lshl_b32 s{sT}, s{sNT}, 6
    v_and_b32 v10, 31, v1
    v_lshlrev_b32 v14, 1, v10
    buffer_load_ushort v{EP+8}, v14, s[{B2}:{B2+3}], s{sT} offen
    """)
    poll(a, 11, sT3, 12)
    st.mark(a, "p5_seen")
    def tail5(i):
        if i == 0:
            a(f"""
            s_lshl_b32 s{sT}, s{sNT}, 15
            s_lshl_b32 s{sT2}, s{sDT}, 11
            s_add_u32 s{sT}, s{sT}, s{sT2}
            s_add_u32 s{sT}, s{sT}, {WS_H}
            buffer_load_dwordx4 {vr(EP,4)}, v2, s[{WS}:{WS+3}], s{sT} offen sc1
            buffer_load_dwordx4 {vr(EP+4,4)}, v2, s[{WS}:{WS+3}], s{sT} offen offset:1024 sc1
            """)
    pre, loop = gemm_loop(a, 2, 28, sAoff, tail5)
    pre()
    for k in range(14, 28):
        w2.read(k, V2R, (k - 14) * 2048)
    loop()
    st.mark(a, "p5_loop")
    a(f"v_lshlrev_b32 v{EP+8}, 16, v{EP+8}")
    for i in range(8):
        a(f"v_lshlrev_b32 v{FIN + 2*i}, 16, v{EP + i}")
        a(f"v_and_b32 v{FIN + 2*i + 1}, 0xffff0000, v{EP + i}")
    for i in range(16):
        a(f"v_add_f32 v{FIN + i}, v{FIN + i}, v{EP+8}")
    a("s_barrier")
    reduce4(a)
    for i in range(8):
        a(f"v_cvt_pk_bf16_f32 v{T+i}, v{FIN + 2*i}, v{FIN + 2*i + 1}")
    a(f"""
    s_lshl_b32 s{sT}, s{sNT}, 15
    s_lshl_b32 s{sT2}, s{sDT}, 6
    s_add_u32 s{sT}, s{sT}, s{sT2}
    v_lshlrev_b32 v10, 10, v10
    v_lshl_add_u32 v10, v7, 4, v10
    buffer_store_dwordx4 {vr(T,4)}, v10, s[{OUT}:{OUT+3}], s{sT} offen
    buffer_store_dwordx4 {vr(T+4,4)}, v10, s[{OUT}:{OUT+3}], s{sT} offen offset:32
    """)


def gen(stamp=False):
    a, slow = Asm(), Asm()
    st = RT(stamp)
    late = prologue(a, st)
    stage1(a, st, late)
    stage2(a, st, slow)
    w1 = stage3(a, st)
    stage45(a, st, w1)
    if stamp:
        a("s_waitcnt vmcnt(0)")
        st.mark(a, "end")
        st.flush(a)
    a("L_end:")
    a("s_endpgm")
    a.ins += slow.ins
    return a, st.names


def text(stamp=False):
    a, names = gen(stamp)
    header = open(f"cdna_kernels/{NAME}.s.ref").read().split("; Override launch")[0]
    k = NAME + "_kernel"
    s = header + f"; @launch grid=(256,1,1) block=(256,1,1) lds={LDS}\n"
    if stamp:
        s += "; stamps: " + " ".join(names) + "\n"
    s += '.amdgcn_target "amdgcn-amd-amdhsa--gfx950"\n.text\n'
    s += kernel_text(k, a)
    s += 'L_code_end:\n.section .rodata,"a"\n'
    s += kernel_desc(k, a)
    return s


if __name__ == "__main__":
    open("mega.s", "w").write(text(False))
    open("mega_st.s", "w").write(text(True))
    print("ok")
```

```python
from common import *

NAME = "sequential_preLN__softmax_full_mha__mixer_token_mlp__prompt"
LDS = 163840
OPT = dict(idle_pf=0, w2nt="nt")

X, WQ, WS, WO, W1, W2, B1, B2, OUT = 4, 8, 12, 16, 20, 24, 28, 32, 36
sw, sxcd, sloc, sNON = 40, 41, 42, 44
sT, sT2, sT3, sCNT = 46, 47, 48, 49
sA = list(range(50, 62))
F1, F2, F3, F4 = (WS_FL + i * 131072 for i in range(4))
WS_NONCE = WS_ST + 262144
SPIN = 0x20000

L_KV_K, L_KV_V = 0, 16384
VGRP = 4096 + 32
L_O = 0
L_WO = 65536
L_X = 131072
L_T = 139264


class RT:
    def __init__(self, on):
        self.on, self.n, self.names = on, 0, []

    SKIP = ("p1_issued",)

    def mark(self, a, name):
        if self.on and name not in self.SKIP:
            assert self.n < 19
            a(f"s_memrealtime s[{64 + 2*self.n}:{65 + 2*self.n}]")
            self.n += 1
            self.names.append(name)

    def flush(self, a):
        if not self.on:
            return
        l = a.label("L_nostamp")
        a(f"s_cmp_lg_u32 s{sw}, 0")
        a(f"s_cbranch_scc1 {l}")
        a(f"s_lshl_b32 s{sT}, s2, 7")
        a(f"s_add_u32 s{sT}, s{sT}, {WS_STAMP}")
        a("v_mov_b32 v4, 0")
        for i in range(self.n):
            a(f"v_mov_b32 v5, s{64 + 2*i}")
            a(f"buffer_store_dword v5, v4, s[{WS}:{WS+3}], s{sT} offen offset:{4*i}")
        a(f"{l}:")


def signal(a, soff, tags, vt):
    a(f"v_mov_b32 v{vt}, s{sNON}")
    a(f"v_mov_b32 v{vt+1}, s{sNON+1}")
    a.wait(*tags)
    a("s_mov_b64 exec, 1")
    a(f"buffer_store_dwordx2 {vr(vt,2)}, off, s[{WS}:{WS+3}], s{soff} sc1")
    a("s_mov_b64 exec, -1")


def poll(a, vaddr, soff, vt):
    l, d = a.label("L_poll"), a.label("L_seen")
    a(f"""
    s_mov_b32 s{sCNT}, 0
    {l}:
    buffer_load_dwordx2 {vr(vt,2)}, v{vaddr}, s[{WS}:{WS+3}], s{soff} offen sc1
    s_add_u32 s{sCNT}, s{sCNT}, 1
    v_cmp_ne_u64 vcc, s[{sNON}:{sNON+1}], {vr(vt,2)}
    s_cbranch_vccz {d}
    s_cmp_lt_u32 s{sCNT}, {SPIN}
    s_cbranch_scc1 {l}
    {d}:
    """)


def prologue(a, st):
    st.mark(a, "start")
    a("s_cmp_ge_u32 s2, 256")
    a("s_cbranch_scc1 L_end")
    names = [("x", X), ("wqkv", WQ), ("ws", WS), ("wo", WO), ("w1", W1), ("w2", W2), ("b1", B1), ("b2", B2), ("out", OUT)]
    for n, r in names:
        a(f"s_load_dwordx2 s[{r}:{r+1}], s[0:1], {ARG[n]}")
    code_prefetch(a, "L_pf_base", "L_code_end-L_pf_base-4", 250, 62 - 2, lines_per_wave=4)
    a("L_pf_base:")
    for n, r in names[:3]:
        a(f"s_mov_b32 s{r+2}, {NBYTES[n]}")
        a(f"s_mov_b32 s{r+3}, 0x00020000")
    a(f"""
    v_lshrrev_b32 v2, 6, v0
    v_and_b32 v1, 63, v0
    v_readfirstlane_b32 s{sw}, v2
    s_and_b32 s{sxcd}, s2, 7
    s_lshr_b32 s{sloc}, s2, 3
    """)
    return names[3:]


def stage1(a, st, late_srds):
    stb, scg, stt, shp, sXa, sXb, sWa, sWb, sMx, sMw = sA[:10]
    a(f"""
    s_lshr_b32 s{stb}, s{sxcd}, 1
    s_lshl_b32 s{stb}, s{stb}, 3
    s_and_b32 s{scg}, s{sloc}, 7
    s_add_u32 s{stb}, s{stb}, s{scg}
    s_and_b32 s{scg}, s{sxcd}, 1
    s_lshl_b32 s{scg}, s{scg}, 2
    s_lshr_b32 s{sT2}, s{sloc}, 3
    s_add_u32 s{scg}, s{scg}, s{sT2}
    s_add_u32 s{sT}, s{stb}, s{scg}
    s_and_b32 s{sT}, s{sT}, 1
    s_lshl_b32 s{sXa}, s{sT}, 9
    s_xor_b32 s{sXb}, s{sXa}, 512
    s_mul_i32 s{sWa}, s{sXa}, 1536
    s_mul_i32 s{sWb}, s{sXb}, 1536
    s_lshl_b32 s{sMx}, s{sw}, 11
    s_mul_i32 s{sMw}, s{sw}, 6144
    s_add_u32 s{sMw}, s{sMw}, 8192
    s_lshl_b32 s{sT}, s{stb}, 16
    s_lshl_b32 s{sT2}, s{sw}, 14
    s_add_u32 s{sT}, s{sT}, s{sT2}
    v_lshrrev_b32 v4, 3, v1
    v_lshlrev_b32 v4, 10, v4
    v_add_u32 v4, s{sT}, v4
    v_lshrrev_b32 v5, 4, v1
    v_and_b32 v6, 7, v1
    v_xor_b32 v5, v5, v6
    v_lshl_add_u32 v2, v5, 4, v4
    v_xor_b32 v5, 4, v5
    v_lshl_add_u32 v3, v5, 4, v4
    v_add_u32 v3, {8192 - 1024}, v3
    s_mul_i32 s{sT}, s{sw}, {16 * 3072}
    s_lshl_b32 s{sT2}, s{scg}, 7
    s_add_u32 s{sT}, s{sT}, s{sT2}
    v_bfe_u32 v6, v1, 2, 3
    v_mul_u32_u24 v6, 3072, v6
    v_lshrrev_b32 v7, 5, v1
    v_lshl_add_u32 v6, v7, 6, v6
    v_and_b32 v7, 3, v1
    v_lshl_add_u32 v6, v7, 4, v6
    v_add_u32 v4, s{sT}, v6
    v_add_u32 v5, {8 * 3072}, v4
    """)

    def dma(c):
        slot = (c & 3) * 32768
        sx, sww = (sXa, sWa) if c < 4 else (sXb, sWb)
        t = f"c{c}"
        def p0():
            a(f"s_add_u32 m0, s{sMx}, {slot}")
            a(f"s_add_u32 s{sT}, s{sx}, {(c & 3) * 128}")
            a(f"buffer_load_dwordx4 v2, s[{X}:{X+3}], s{sT} offen lds", tag=t)
            a(f"buffer_load_dwordx4 v3, s[{X}:{X+3}], s{sT} offen offset:1024 lds", tag=t)
        def p1():
            a(f"s_add_u32 m0, s{sMw}, {slot}")
            a(f"s_add_u32 s{sT2}, s{sww}, {(c & 3) * 196608}")
            a(f"buffer_load_dwordx4 v4, s[{WQ}:{WQ+3}], s{sT2} offen lds", tag=t)
            a(f"buffer_load_dwordx4 v4, s[{WQ}:{WQ+3}], s{sT2} offen offset:1024 lds", tag=t)
        def p2():
            a(f"buffer_load_dwordx4 v4, s[{WQ}:{WQ+3}], s{sT2} offen offset:2048 lds", tag=t)
            a(f"s_add_u32 m0, s{sMw}, {slot + 3072}")
            a(f"buffer_load_dwordx4 v5, s[{WQ}:{WQ+3}], s{sT2} offen lds", tag=t)
        def p3():
            a(f"buffer_load_dwordx4 v5, s[{WQ}:{WQ+3}], s{sT2} offen offset:1024 lds", tag=t)
            a(f"buffer_load_dwordx4 v5, s[{WQ}:{WQ+3}], s{sT2} offen offset:2048 lds", tag=t)
        return [p0, p1, p2, p3]

    for p in dma(0):
        p()
    a(f"s_add_u32 s62, s{WS}, {WS_NONCE}")
    a(f"s_addc_u32 s63, s{WS+1}, 0")
    a(f"s_load_dwordx2 s[{sNON}:{sNON+1}], s[62:63], 0")
    for c in range(1, 4):
        for p in dma(c):
            p()
    st.mark(a, "p1_issued")
    for n, r in late_srds:
        a(f"s_mov_b32 s{r+2}, {NBYTES[n]}")
        a(f"s_mov_b32 s{r+3}, 0x00020000")
    a(f"""
    s_lshl_b32 s{sT}, s2, 10
    s_add_u32 s{sT}, s{sT}, {WS_ST}
    v_lshlrev_b32 v6, 2, v0
    v_mov_b32 v7, -1
    """)
    a(f"buffer_store_dword v7, v6, s[{WS}:{WS+3}], s{sT} offen sc1", tag="st1")
    a(f"""
    s_add_u32 s{sNON}, s{sNON}, 0x9e3779b9
    s_add_u32 s{sNON+1}, s{sNON+1}, 0x7f4a7c15
    s_and_b32 s{stt}, s{sw}, 1
    s_lshr_b32 s{shp}, s{sw}, 1
    s_lshl_b32 s{sT}, s{stt}, 12
    v_and_b32 v16, 31, v1
    v_lshrrev_b32 v17, 5, v1
    v_bfe_u32 v18, v1, 1, 3
    v_xor_b32 v18, v18, v17
    v_lshlrev_b32 v18, 4, v18
    v_lshl_add_u32 v18, v16, 7, v18
    v_add_u32 v6, s{sT}, v18
    v_xor_b32 v7, 32, v6
    v_xor_b32 v8, 64, v6
    v_xor_b32 v9, 96, v6
    v_add_u32 v10, 0x10000, v6
    v_add_u32 v11, 0x10000, v7
    v_add_u32 v12, 0x10000, v8
    v_add_u32 v13, 0x10000, v9
    s_lshl_b32 s{sT}, s{shp}, 9
    v_mul_u32_u24 v14, 3072, v17
    v_bfe_u32 v18, v1, 2, 2
    v_lshl_add_u32 v14, v18, 6, v14
    v_bfe_u32 v18, v1, 4, 1
    v_lshl_add_u32 v14, v18, 5, v14
    v_and_b32 v18, 3, v1
    v_lshl_add_u32 v14, v18, 3, v14
    v_add_u32 v14, s{sT}, v14
    v_add_u32 v15, 0x10000, v14
    """)
    SEL, IDX, SXX, S0, S1, TMP = 16, 20, 21, 104, 108, 112
    a(f"""
    v_bfe_u32 v22, v1, 3, 1
    v_lshrrev_b32 v23, 5, v1
    v_xor_b32 v22, v22, v23
    v_and_b32 v23, 6, v1
    v_or_b32 v22, v22, v23
    v_cmp_eq_u32 vcc, 0, v22
    v_cmp_eq_u32 s[62:63], 4, v22
    v_mov_b32 v22, 0x3f803f80
    v_cndmask_b32 v{SEL}, 0, v22, vcc
    v_cndmask_b32 v{SEL+1}, 0, v22, vcc
    v_cndmask_b32 v{SEL+2}, 0, v22, s[62:63]
    v_cndmask_b32 v{SEL+3}, 0, v22, s[62:63]
    v_and_b32 v22, 1, v1
    v_mul_u32_u24 v22, 0xaaaa, v22
    v_add_u32 v{IDX}, 0x4444, v22
    v_mov_b32 v{SXX}, 0
    v_mov_b32 v{SXX+1}, 0
    s_mov_b32 s{sT3}, 0xffff0000
    """)
    FR = 24
    AQ, AK, AV = 56, 72, 88
    for r in range(8):
        a(f"v_mov_b32 v{S0+r}, 0")

    def reads(n):
        c, j = n >> 2, n & 3
        slot = c & 3
        hi, so = slot >> 1, (slot & 1) * 32768
        b = FR + 16 * (n & 1)
        r = [(f"ds_read_b128 {vr(b,4)}, v{6 + j + 4*hi} offset:{so}", f"r{n}")]
        for seg in range(3):
            for e in range(2):
                r.append((f"ds_read_b64_tr_b16 {vr(b + 4 + 4*seg + 2*e, 2)}, v{14 + hi} offset:{so + 8192 + j*6144 + seg*1024 + e*256}", f"r{n}"))
        return r

    def step(n, rd, side):
        b = FR + 16 * (n & 1)
        xf = vr(b, 4)
        c = lambda acc: "0" if n == 0 else vr(acc, 16)
        sq = []
        for i in range(4):
            sq.append(f"v_lshlrev_b32 v{TMP+2*i}, 16, v{b+i}")
            sq.append(f"v_and_b32 v{TMP+2*i+1}, s{sT3}, v{b+i}")
        for i in range(8):
            sq.append(f"v_fmac_f32 v{SXX + (i & 1)}, v{TMP+i}, v{TMP+i}")
        def put(rs, vs):
            for t, g in rs:
                a(t, tag=g)
            for t in vs:
                a(t)
        a(f"v_mfma_f32_32x32x16_bf16 {vr(AQ,16)}, {vr(b+4,4)}, {xf}, {c(AQ)}")
        put(rd[0:3], sq[0:3])
        a(f"v_mfma_f32_32x32x16_bf16 {vr(AK,16)}, {vr(b+8,4)}, {xf}, {c(AK)}")
        put(rd[3:5], sq[3:7])
        a(f"v_mfma_f32_32x32x16_bf16 {vr(AV,16)}, {xf}, {vr(b+12,4)}, {c(AV)}")
        put(rd[5:7], sq[7:11])
        a(f"v_smfmac_f32_16x16x64_bf16 {vr(S0,4)}, {vr(SEL,4)}, {vr(b,8)}, v{IDX}")
        put([], sq[11:14])
        a(f"v_smfmac_f32_16x16x64_bf16 {vr(S1,4)}, {vr(SEL,4)}, {vr(b+8,8)}, v{IDX}")
        if side:
            side()
        put([], sq[14:16])

    a.wait("c0")
    a("s_barrier")
    st.mark(a, "p1_c0")
    for t, g in reads(0):
        a(t, tag=g)
    for n in range(32):
        m = n + 1
        side = None
        if m < 32:
            c, j = m >> 2, m & 3
            if j == 0:
                a.wait(f"c{c}", f"r{n}")
                a("s_barrier")
            if 1 <= c <= 4:
                side = dma(c + 3)[j]
        step(n, reads(m) if m < 32 else [], side)
    st.mark(a, "p1_loop")

    MU, RS, RQ = 22, 18, 24
    a(f"""
    s_lshl_b32 s{sT}, s{sw}, 11
    s_add_u32 s{sT}, s{sT}, {L_T}
    v_add_f32 v{SXX}, v{SXX}, v{SXX+1}
    v_lshl_add_u32 v3, v1, 2, s{sT}
    v_and_b32 v2, 31, v1
    v_lshl_add_u32 v2, v2, 2, s{sT}
    v_mov_b32 v25, v{SXX}
    v_lshrrev_b32 v4, 5, v1
    v_lshl_add_u32 v4, v4, 4, s{sT}
    v_add_f32 v{S0}, v{S0}, v{S0+1}
    v_add_f32 v{S1}, v{S1}, v{S1+1}
    v_permlane32_swap_b32 v25, v{SXX}
    ds_write_b32 v3, v{S0} offset:0
    ds_write_b32 v3, v{S1} offset:256
    v_mov_b32 v26, v{S1}
    """)
    B0, B1_, B2_, B3 = 112, 128, 144, 160
    for q in range(4):
        a(f"ds_read_b128 {vr(B0+4*q,4)}, v4 offset:{128 + 32*q}")
    for q in range(4):
        a(f"ds_read_b128 {vr(B1_+4*q,4)}, v4 offset:{256 + 32*q}")
    a(f"""
    v_permlane32_swap_b32 v26, v{S0}
    v_add_f32 v{SXX}, v{SXX}, v25
    v_mov_b32 v27, v26
    v_mov_b32 v28, v{S0}
    v_mul_f32 v{SXX}, {f32(1.0/D)}, v{SXX}
    v_permlane32_swap_b32 v27, v26
    v_permlane32_swap_b32 v28, v{S0}
    v_mul_f32 v{MU}, {f32(-1.0/D)}, v26
    v_mov_b32 v26, v28
    v_fma_f32 v{SXX}, -v{MU}, v{MU}, v{SXX}
    v_max_f32 v{SXX}, 0, v{SXX}
    v_add_f32 v{SXX}, {f32(EPS)}, v{SXX}
    v_rsq_f32 v{RS}, v{SXX}
    ds_write_b32 v2, v{MU} offset:512
    ds_write_b32 v2, v{RS} offset:640
    v_mul_f32 v{RQ}, {f32(0.25*LOG2E)}, v{RS}
    """)
    for q in range(4):
        a(f"ds_read_b128 {vr(B2_+4*q,4)}, v4 offset:{512 + 32*q}")
    for q in range(4):
        a(f"ds_read_b128 {vr(B3+4*q,4)}, v4 offset:{640 + 32*q}")
    a(f"""
    s_lshl_b32 s{sT}, s{scg}, 1
    s_add_u32 s{sT}, s{sT}, s{shp}
    s_lshl_b32 s{sT2}, s{stb}, 1
    s_add_u32 s{sT2}, s{sT2}, s{stt}
    s_lshl_b32 s{sT3}, s{sT}, 6
    s_add_u32 s{sT3}, s{sT3}, s{sT2}
    s_lshl_b32 s{sT3}, s{sT3}, 7
    s_add_u32 s{sT3}, s{sT3}, {F1}
    s_lshl_b32 s{sT}, s{sT}, 17
    s_lshl_b32 s{sT2}, s{sT2}, 10
    s_add_u32 s{sT}, s{sT}, s{sT2}
    v_lshlrev_b32 v2, 4, v1
    v_and_b32 v6, 0x33, v1
    v_bfe_u32 v7, v1, 2, 1
    v_lshl_add_u32 v6, v7, 3, v6
    v_bfe_u32 v7, v1, 3, 1
    v_lshl_add_u32 v6, v7, 2, v6
    v_lshlrev_b32 v6, 4, v6
    v_and_b32 v7, 15, v1
    v_lshlrev_b32 v7, 4, v7
    v_lshrrev_b32 v8, 5, v1
    v_lshl_add_u32 v7, v8, 8, v7
    v_bfe_u32 v8, v1, 4, 1
    v_lshl_add_u32 v7, v8, 16, v7
    """)
    P = 28
    for (acc, bc, scale, base, addr) in ((AK, B1_, RS, WS_K, 6), (AQ, B0, RQ, WS_Q, 2)):
        for i in range(8):
            a(f"v_pk_fma_f32 {vr(acc+2*i,2)}, {vr(bc+2*i,2)}, {vr(MU,2)}, {vr(acc+2*i,2)} op_sel_hi:[1,0,1]")
        for i in range(8):
            a(f"v_pk_mul_f32 {vr(acc+2*i,2)}, {vr(acc+2*i,2)}, {vr(scale,2)} op_sel_hi:[1,0]")
        for i in range(8):
            a(f"v_cvt_pk_bf16_f32 v{P+i}, v{acc+2*i}, v{acc+2*i+1}")
        a(f"s_add_u32 s{sT2}, s{sT}, {base}")
        a(f"buffer_store_dwordx4 {vr(P,4)}, v{addr}, s[{WS}:{WS+3}], s{sT2} offen sc1", tag="st1")
        a(f"s_add_u32 s{sT2}, s{sT}, {base + 65536}")
        a(f"buffer_store_dwordx4 {vr(P+4,4)}, v{addr}, s[{WS}:{WS+3}], s{sT2} offen sc1", tag="st1")
        P += 8
    for i in range(8):
        a(f"v_pk_fma_f32 {vr(AV+2*i,2)}, {vr(B2_+2*i,2)}, v[26:27], {vr(AV+2*i,2)} op_sel_hi:[1,0,1]")
    for i in range(8):
        a(f"v_pk_mul_f32 {vr(AV+2*i,2)}, {vr(AV+2*i,2)}, {vr(B3+2*i,2)}")
    for i in range(8):
        a(f"v_cvt_pk_bf16_f32 v{P+i}, v{AV+2*i}, v{AV+2*i+1}")
    a(f"s_add_u32 s{sT2}, s{sT}, {WS_V}")
    a(f"buffer_store_dwordx4 {vr(P,4)}, v7, s[{WS}:{WS+3}], s{sT2} offen sc1", tag="st1")
    a(f"buffer_store_dwordx4 {vr(P+4,4)}, v7, s[{WS}:{WS+3}], s{sT2} offen offset:512 sc1", tag="st1")
    st.mark(a, "p1_stored")


def stage2(a, st, slow):
    shead, sqt, sSRC, sM0, sM1, sPASS, sIT, sWo, sMw, sP1, sP2, sQ = sA
    QF, IDX = [4, 8], 3
    AV = 12
    KR, VA, VB = [20, 24], [28, 32], [36, 40]
    OA = [44, 60]
    SB = [76, 92, 108, 124]
    WA, PA1, PA2, PD, FL = 140, 144, 145, 146, 148
    CM = [156, 172]
    KV = WQ
    a("s_barrier")
    a(f"""
    s_lshl_b32 s{shead}, s{sxcd}, 2
    s_and_b32 s{sT}, s{sloc}, 3
    s_add_u32 s{shead}, s{shead}, s{sT}
    s_lshr_b32 s{sqt}, s{sloc}, 2
    s_lshl_b32 s{sqt}, s{sqt}, 2
    s_add_u32 s{sqt}, s{sqt}, s{sw}
    s_lshl_b32 s{sSRC}, s{shead}, 16
    s_lshl_b32 s{sQ}, s{sqt}, 11
    s_add_u32 s{sQ}, s{sQ}, s{sSRC}
    s_lshr_b32 s{sT2}, s{sw}, 1
    s_lshl_b32 s{sT}, s{sT2}, 12
    s_add_u32 s{sSRC}, s{sSRC}, s{sT}
    s_bitcmp1_b32 s{sw}, 0
    s_cselect_b32 s{sM1}, {VGRP - 4096}, 0
    s_cselect_b32 s{sM0}, {L_KV_V}, {L_KV_K}
    s_cselect_b32 s{sT}, {WS_V - WS_K}, 0
    s_add_u32 s{sM1}, s{sM1}, 4096
    s_add_u32 s{sSRC}, s{sSRC}, s{sT}
    s_add_u32 s{sSRC}, s{sSRC}, {WS_K}
    s_mov_b32 s{KV}, s{WS}
    s_mov_b32 s{KV+1}, s{WS+1}
    s_or_b32 s{KV+2}, s{sSRC}, 0xffff
    s_add_u32 s{KV+2}, s{KV+2}, 1
    s_mul_i32 s{sT2}, s{sT2}, s{sM1}
    s_add_u32 s{sM0}, s{sM0}, s{sT2}
    s_lshl_b32 s{sM1}, s{sM1}, 1
    s_add_u32 s{sM1}, s{sM1}, s{sM0}
    v_and_b32 v20, 1, v1
    v_cmp_eq_u32 vcc, 0, v20
    v_mov_b32 v21, 0x3f803f80
    v_cndmask_b32 v24, 0, v21, vcc
    v_bfe_u32 v21, v1, 1, 2
    v_mul_u32_u24 v21, {VGRP}, v21
    v_lshl_add_u32 v21, v20, 4, v21
    v_mov_b32 v25, v24
    v_mov_b32 v26, v24
    v_mov_b32 v27, v24
    """)
    a(f"ds_write_b128 v21, v[24:27] offset:{L_KV_V + 4096}", tag="ones")
    signal(a, sT3, ["st1"], 22)
    st.mark(a, "p1_sig")
    a(f"""
    v_and_b32 v20, 15, v1
    v_lshlrev_b32 v20, 4, v20
    v_lshrrev_b32 v21, 5, v1
    v_lshl_add_u32 v20, v21, 8, v20
    v_add_u32 v20, {L_KV_V}, v20
    v_and_b32 v21, 11, v1
    v_min_u32 v21, 1, v21
    v_lshlrev_b32 v21, 4, v21
    v_add_u32 v21, {L_KV_V + 4096}, v21
    v_and_b32 v22, 16, v1
    v_cmp_eq_u32 vcc, 0, v22
    v_mov_b32 v{IDX}, 0xdddd
    s_mov_b32 s{sPASS}, 0
    """)
    for i in range(8):
        a(f"v_cndmask_b32 v{AV+i}, v21, v20, vcc")
        if i < 7:
            a("v_add_u32 v20, 512, v20")
    for i in range(32):
        a(f"v_mov_b32 v{OA[0]+i}, 0")
    for i in range(8):
        a(f"v_mov_b32 v{SB[3]+8+i}, 0")
    for i in range(4):
        a(f"v_mov_b32 v{VB[1]+i}, 0")
    a(f"""
    s_lshl_b32 s{sMw}, s{sw}, 12
    s_add_u32 s{sMw}, s{sMw}, {L_WO}
    s_lshl_b32 s{sWo}, s{sw}, 15
    s_and_b32 s{sT}, s{sloc}, 7
    s_lshl_b32 s{sT}, s{sT}, 7
    s_add_u32 s{sWo}, s{sWo}, s{sT}
    v_bfe_u32 v{WA}, v1, 2, 3
    v_lshlrev_b32 v{WA}, 10, v{WA}
    v_lshrrev_b32 v20, 5, v1
    v_lshl_add_u32 v{WA}, v20, 6, v{WA}
    v_and_b32 v20, 3, v1
    v_lshl_add_u32 v{WA}, v20, 4, v{WA}
    v_add_u32 v{WA+1}, 7168, v{WA}
    v_add_u32 v{WA+2}, {2*7168}, v{WA}
    v_add_u32 v{WA+3}, {3*7168}, v{WA}
    s_lshl_b32 s{sP1}, s{sloc}, 2
    s_add_u32 s{sP1}, s{sP1}, s{sw}
    s_and_b32 s{sP2}, s{sxcd}, 1
    s_lshl_b32 s{sP2}, s{sP2}, 7
    s_add_u32 s{sP2}, s{sP2}, s{sP1}
    s_mul_i32 s{sP1}, s{sP1}, {16 * F * 2}
    s_mul_i32 s{sP2}, s{sP2}, {7 * S * 2}
    s_lshr_b32 s{sT}, s{sxcd}, 1
    s_mul_i32 s{sT2}, s{sT}, 896
    s_add_u32 s{sP1}, s{sP1}, s{sT2}
    s_lshl_b32 s{sT}, s{sT}, 10
    s_add_u32 s{sP2}, s{sP2}, s{sT}
    v_lshrrev_b32 v{PA1}, 4, v1
    v_mul_u32_u24 v{PA1}, {F * 2}, v{PA1}
    v_bfe_u32 v20, v1, 1, 3
    v_min_u32 v20, 6, v20
    v_lshl_add_u32 v{PA1}, v20, 7, v{PA1}
    v_lshrrev_b32 v{PA2}, 3, v1
    v_min_u32 v{PA2}, 6, v{PA2}
    v_lshlrev_b32 v{PA2}, 12, v{PA2}
    v_bfe_u32 v20, v1, 2, 1
    v_lshl_add_u32 v{PA2}, v20, 7, v{PA2}
    v_lshlrev_b32 v{FL}, 7, v1
    s_lshr_b32 s{sT}, s{shead}, 1
    s_lshl_b32 s{sT}, s{sT}, 13
    s_add_u32 s{sT}, s{sT}, {F1}
    s_mov_b32 m0, s{sM0}
    s_mov_b32 s{sIT}, 0
    """)
    poll(a, FL, sT, FL + 2)
    st.mark(a, "p2_seen")

    def kv_dma(i, tag):
        a(f"buffer_load_dwordx4 v2, s[{KV}:{KV+3}], s{sSRC} offen offset:{i*1024} sc1 lds", tag=tag)

    def kv_head(par):
        a(f"s_mov_b32 m0, s{(sM0, sM1)[par]}")
        a(f"s_add_u32 s{sSRC}, s{sSRC}, 8192")

    for i in range(4):
        kv_dma(i, "kv0")
    a(f"buffer_load_dwordx4 {vr(QF[0],4)}, v2, s[{WS}:{WS+3}], s{sQ} offen sc1")
    a(f"buffer_load_dwordx4 {vr(QF[1],4)}, v2, s[{WS}:{WS+3}], s{sQ} offen offset:1024 sc1")
    kv_head(1)
    for i in range(2):
        kv_dma(i, "kv1")

    def rdK(t):
        a(f"ds_read_b128 {vr(KR[t&1],4)}, v2 offset:{L_KV_K + (t & 15)*1024}", tag="rd")

    def rdV(t, j):
        a(f"ds_read_b128 {vr((VA, VB)[j][t&1],4)}, v{AV + 2*(t&3) + j} offset:{((t >> 2) & 3) * VGRP}", tag="rd")

    def qk(u):
        a(f"v_mfma_f32_32x32x16_bf16 {vr(SB[u&3],16)}, {vr(KR[(u>>1)&1],4)}, {vr(QF[u&1],4)}, 0")

    def pv(u, j):
        a(f"v_smfmac_f32_32x32x32_bf16 {vr(OA[u&1],16)}, {vr((VA, VB)[j][(u>>1)&1],4)}, {vr(SB[u&3]+8*j,8)}, v{IDX}")

    side = {}
    def at(u, slot, f):
        side.setdefault((u & 31, slot), []).append(f)
    for par in range(2):
        u0 = 16 * par + 14
        at(u0, 1, lambda par=par: kv_head(par))
        for i in range(4):
            at(u0 + i, 2, lambda i=i, par=par: kv_dma(i, f"kv{par}"))
    def wo_head():
        a(f"s_mov_b32 m0, s{sMw}")
        a(f"s_add_u32 s{sMw}, s{sMw}, 16384")
    at(4, 1, wo_head)
    for i in range(4):
        at(4 + 2*i, 2, lambda i=i: a(f"buffer_load_dwordx4 v{WA+i}, s[{WO}:{WO+3}], s{sWo} offen offset:{i*1024} lds", tag="wo"))
    at(12, 1, lambda: a(f"s_add_u32 s{sWo}, s{sWo}, 131072"))
    at(20, 2, lambda: a(f"buffer_load_dword v{PD}, v{PA1}, s[{W1}:{W1+3}], s{sP1} offen"))
    at(22, 1, lambda: a(f"s_add_u32 s{sP1}, s{sP1}, {4 * F * 2}"))
    at(24, 2, lambda: a(f"buffer_load_dword v{PD+1}, v{PA2}, s[{W2}:{W2+3}], s{sP2} offen {OPT['w2nt']}"))
    at(26, 1, lambda: a(f"s_add_u32 s{sP2}, s{sP2}, 256"))
    at(28, 1, lambda: a(f"s_add_u32 s{sIT}, s{sIT}, 1"))

    a.wait("kv0", "ones")
    a("s_barrier")
    st.mark(a, "p2_go")
    rdK(0)
    rdV(0, 0)
    rdV(0, 1)
    qk(0)
    a("s_waitcnt vmcnt(2)")
    a("s_nop 10")
    a("L_attn:")
    for u in range(32):
        t, q = u >> 1, u & 1
        s = SB[u & 3]
        for i in range(16):
            a(f"v_exp_f32 v{s+i}, v{s+i}")
            if i == 0:
                qk(u + 1)
                if u % 16 == 14:
                    a.wait("rd", f"kv{1 - (u >> 4)}")
                    a("s_barrier")
                if q == 0:
                    a.wait("rd")
                    rdK(t + 1)
                else:
                    rdV(t + 1, 0)
            if i == 5:
                pv(u - 1, 1)
                if q == 1:
                    rdV(t + 1, 1)
                for f in side.get((u, 1), ()):
                    f()
            if i == 10:
                pv(u, 0)
                if q == 0:
                    a.wait("rd")
                for f in side.get((u, 2), ()):
                    f()
                if u == 31:
                    a(f"s_cmp_lt_u32 s{sIT}, 4")
    a("s_cbranch_scc1 L_attn")
    pv(31, 1)
    st.mark(a, "p2_loop")
    T = 20
    a(f"""
    L_attn_check:
    v_mov_b32 v{T+8}, {f32(2.0**-40)}
    v_mov_b32 v{T+9}, {f32(2.0**40)}
    v_mov_b32 v{T+10}, {f32(2.0**120)}
    s_lshl_b32 s{sT}, s{sqt}, 16
    s_lshl_b32 s{sT2}, s{shead}, 10
    s_add_u32 s{sT}, s{sT}, s{sT2}
    s_add_u32 s{sT}, s{sT}, {WS_O}
    s_add_u32 s{sT2}, s{sT}, 32768
    s_lshl_b32 s{sT3}, s{sqt}, 5
    s_add_u32 s{sT3}, s{sT3}, s{shead}
    s_lshl_b32 s{sT3}, s{sT3}, 7
    s_add_u32 s{sT3}, s{sT3}, {F2}
    s_mov_b64 s[62:63], 0
    """)
    for q in range(2):
        o = OA[q]
        a(f"""
        v_rcp_f32 v{T+2*q}, v{o+8}
        v_add_f32 v{T+4}, |v{o}|, |v{o+1}|
        v_add_f32 v{T+5}, |v{o+2}|, |v{o+3}|
        v_add_f32 v{T+6}, |v{o+4}|, |v{o+5}|
        v_add_f32 v{T+7}, |v{o+6}|, |v{o+7}|
        v_cmp_nge_f32 vcc, v{o+8}, v{T+8}
        v_add_f32 v{T+4}, v{T+4}, v{T+5}
        s_or_b64 s[62:63], s[62:63], vcc
        v_cmp_nle_f32 vcc, v{o+8}, v{T+9}
        v_add_f32 v{T+6}, v{T+6}, v{T+7}
        s_or_b64 s[62:63], s[62:63], vcc
        v_add_f32 v{T+4}, v{T+4}, v{T+6}
        v_cmp_nle_f32 vcc, v{T+4}, v{T+10}
        s_or_b64 s[62:63], s[62:63], vcc
        """)
    a(f"""
    s_cselect_b32 s{sIT}, 1, 0
    s_cmp_gt_u32 s{sIT}, s{sPASS}
    s_cbranch_scc1 L_attn_slow
    """)
    for q in range(2):
        o = OA[q]
        for i in range(4):
            a(f"v_pk_mul_f32 {vr(o+2*i,2)}, {vr(o+2*i,2)}, {vr(T+2*q,2)} op_sel_hi:[1,0]")
        for i in range(4):
            a(f"v_cvt_pk_bf16_f32 v{T+4+4*q+i}, v{o+2*i}, v{o+2*i+1}")
        a(f"buffer_store_dwordx4 {vr(T+4+4*q,4)}, v2, s[{WS}:{WS+3}], s{(sT, sT2)[q]} offen sc1", tag="st2")

    b = slow
    b(f"""
    L_attn_slow:
    s_mov_b32 s{sPASS}, 1
    s_lshl_b32 s{sT}, s{shead}, 16
    s_add_u32 s{sT}, s{sT}, {WS_K}
    s_add_u32 s{sT2}, s{sT}, 65536
    v_mov_b32 v29, 0xff800000
    v_mov_b32 v30, 0xff800000
    L_attn_max:
    buffer_load_dwordx4 {vr(KR[0],4)}, v2, s[{WS}:{WS+3}], s{sT} offen sc1
    v_mfma_f32_32x32x16_bf16 {vr(SB[0],16)}, {vr(KR[0],4)}, {vr(QF[0],4)}, 0
    v_mfma_f32_32x32x16_bf16 {vr(SB[1],16)}, {vr(KR[0],4)}, {vr(QF[1],4)}, 0
    """)
    for q in range(2):
        for i in range(8):
            b(f"v_max3_f32 v{29+q}, v{SB[q]+2*i}, v{SB[q]+2*i+1}, v{29+q}")
    b(f"""
    s_add_u32 s{sT}, s{sT}, 1024
    s_cmp_lt_u32 s{sT}, s{sT2}
    s_cbranch_scc1 L_attn_max
    v_mov_b32 v31, v29
    v_mov_b32 v32, v30
    v_permlane32_swap_b32 v31, v29
    v_permlane32_swap_b32 v32, v30
    v_max_f32 v29, v29, v31
    v_max_f32 v30, v30, v32
    """)
    for q in range(2):
        for i in range(16):
            b(f"v_sub_f32 v{CM[q]+i}, 0, v{29+q}")
    for i in range(32):
        b(f"v_mov_b32 v{OA[0]+i}, 0")
    for i in range(4):
        b(f"v_mov_b32 v{VA[0]+i}, 0x3f803f80")
        b(f"v_mov_b32 v{VB[0]+i}, 0x3f803f80")
    b(f"""
    v_add_u32 v{AV}, {WS_V - WS_K - L_KV_V}, v{AV}
    s_sub_u32 s{sT}, s{sT}, 65536
    s_mov_b32 s62, 0xffff
    s_mov_b32 s63, 0xffff
    L_attn_redo:
    buffer_load_dwordx4 {vr(KR[0],4)}, v2, s[{WS}:{WS+3}], s{sT} offen sc1
    s_mov_b64 exec, s[62:63]
    buffer_load_dwordx4 {vr(VA[0],4)}, v{AV}, s[{WS}:{WS+3}], s{sT} offen sc1
    buffer_load_dwordx4 {vr(VB[0],4)}, v{AV}, s[{WS}:{WS+3}], s{sT} offen offset:512 sc1
    s_mov_b64 exec, -1
    """)
    for q in range(2):
        b(f"v_mfma_f32_32x32x16_bf16 {vr(SB[q],16)}, {vr(KR[0],4)}, {vr(QF[q],4)}, {vr(CM[q],16)}")
    for q in range(2):
        for r in range(16):
            b(f"v_exp_f32 v{SB[q]+r}, v{SB[q]+r}")
        b(f"v_smfmac_f32_32x32x32_bf16 {vr(OA[q],16)}, {vr(VA[0],4)}, {vr(SB[q],8)}, v{IDX}")
        b(f"v_smfmac_f32_32x32x32_bf16 {vr(OA[q],16)}, {vr(VB[0],4)}, {vr(SB[q]+8,8)}, v{IDX}")
    b(f"""
    s_add_u32 s{sT}, s{sT}, 1024
    s_cmp_lt_u32 s{sT}, s{sT2}
    s_cbranch_scc1 L_attn_redo
    s_branch L_attn_check
    """)


class WStream:
    def __init__(self, a, srd, row, soff, va, vrd, hs_es, name):
        self.a, self.srd, self.row, self.soff, self.va, self.vrd, self.name = a, srd, row, soff, va, vrd, name
        self.es = hs_es[1]

    def dma(self, k, smem, lds_off):
        a = self.a
        a(f"s_add_u32 m0, s{smem}, {lds_off}")
        if k:
            a(f"s_add_u32 s{self.soff}, s{self.soff}, {16 * self.row}")
        a(f"buffer_load_dwordx4 v{self.va}, s[{self.srd}:{self.srd+3}], s{self.soff} offen lds", tag=f"{self.name}{k}")
        a(f"buffer_load_dwordx4 v{self.va+1}, s[{self.srd}:{self.srd+3}], s{self.soff} offen offset:1024 lds", tag=f"{self.name}{k}")

    def read(self, k, vrd, lds_off):
        a = self.a
        a.wait(f"{self.name}{k}")
        for nt in range(2):
            for e in range(2):
                a(f"ds_read_b64_tr_b16 {ar(8*k + 4*nt + 2*e, 2)}, v{vrd} offset:{lds_off + nt*512 + e*self.es}", tag=f"{self.name}r")


def wstream_addr(a, row, va, vrd, hs):
    a(f"""
    v_bfe_u32 v{va}, v1, 2, 3
    v_mul_u32_u24 v{va}, {row}, v{va}
    v_lshrrev_b32 v{vrd}, 5, v1
    v_lshl_add_u32 v{va}, v{vrd}, 6, v{va}
    v_and_b32 v{va+1}, 3, v1
    v_lshl_add_u32 v{va}, v{va+1}, 4, v{va}
    v_mul_u32_u24 v{vrd}, {hs}, v{vrd}
    v_lshl_add_u32 v{vrd}, v{va+1}, 3, v{vrd}
    v_bfe_u32 v{va+1}, v1, 2, 2
    v_lshl_add_u32 v{vrd}, v{va+1}, 6, v{vrd}
    v_bfe_u32 v{va+1}, v1, 4, 1
    v_lshl_add_u32 v{vrd}, v{va+1}, 5, v{vrd}
    v_add_u32 v{va+1}, {8 * row - 1024}, v{va}
    """)


sDB, sNB, sWoff, sStg = 58, 59, 60, 61
VWA, VWR = 244, 246


def stage3(a, st):
    stb, sdb, stt, sdt, sO, sMo, sST, sDT = sA[:8]
    WF = 112
    a(f"""
    s_lshl_b32 s{stb}, s{sxcd}, 2
    s_lshr_b32 s{sT}, s{sloc}, 3
    s_add_u32 s{stb}, s{stb}, s{sT}
    s_and_b32 s{sdb}, s{sloc}, 7
    s_and_b32 s{stt}, s{sw}, 1
    s_lshr_b32 s{sdt}, s{sw}, 1
    s_lshl_b32 s{sT}, s{stb}, 16
    s_lshl_b32 s{sT2}, s{sw}, 14
    s_add_u32 s{sT}, s{sT}, s{sT2}
    s_lshl_b32 s{sT2}, s{sdb}, 7
    s_add_u32 s{sT}, s{sT}, s{sT2}
    v_lshrrev_b32 v4, 3, v1
    v_lshlrev_b32 v4, 10, v4
    v_lshrrev_b32 v5, 4, v1
    v_and_b32 v6, 7, v1
    v_xor_b32 v5, v5, v6
    v_lshl_add_u32 v3, v5, 4, v4
    v_xor_b32 v5, 4, v5
    v_lshl_add_u32 v4, v5, 4, v4
    v_add_u32 v4, {8192 - 1024}, v4
    s_lshl_b32 s{sT2}, s{sw}, 11
    s_add_u32 m0, s{sT2}, {L_X}
    """)
    a(f"buffer_load_dwordx4 v3, s[{X}:{X+3}], s{sT} offen lds", tag="xt")
    a(f"buffer_load_dwordx4 v4, s[{X}:{X+3}], s{sT} offen offset:1024 lds", tag="xt")
    a(f"""
    s_lshl_b32 s{sT}, s{stt}, 15
    v_add_u32 v3, s{sT}, v2
    s_lshl_b32 s{sT}, s{sdt}, 9
    s_add_u32 s{sT}, s{sT}, {L_WO}
    v_lshrrev_b32 v7, 5, v1
    v_lshlrev_b32 v4, 8, v7
    v_bfe_u32 v8, v1, 2, 2
    v_lshl_add_u32 v4, v8, 6, v4
    v_bfe_u32 v8, v1, 4, 1
    v_lshlrev_b32 v9, 5, v8
    v_and_b32 v8, 1, v1
    v_lshl_add_u32 v9, v8, 4, v9
    v_bfe_u32 v8, v1, 1, 1
    v_lshl_add_u32 v9, v8, 3, v9
    v_add3_u32 v4, v4, v9, s{sT}
    """)
    signal(a, sT3, ["st2", "wo", "kv0", "kv1"], 22)
    st.mark(a, "p2_sig")
    a.wait("rd")
    a("s_barrier")
    for n in range(32):
        a(f"ds_read_b64_tr_b16 {vr(WF + 4*n, 2)}, v4 offset:{n*2048}", tag="wor")
        a(f"ds_read_b64_tr_b16 {vr(WF + 4*n + 2, 2)}, v4 offset:{n*2048 + 1024}", tag="wor")
    a(f"""
    s_lshl_b32 s{sT}, s{stt}, 12
    s_add_u32 s{sT}, s{sT}, {L_X}
    s_lshl_b32 s{sT2}, s{sdt}, 6
    v_and_b32 v10, 31, v1
    v_bfe_u32 v8, v1, 1, 3
    v_xor_b32 v8, v8, v7
    v_lshlrev_b32 v8, 4, v8
    v_xor_b32 v8, s{sT2}, v8
    v_lshl_add_u32 v8, v10, 7, v8
    v_add_u32 v5, s{sT}, v8
    v_xor_b32 v6, 32, v5
    s_lshl_b32 s{sMo}, s{stt}, 15
    s_lshl_b32 s{sT}, s{sdt}, 12
    s_add_u32 s{sMo}, s{sMo}, s{sT}
    s_lshl_b32 s{sO}, s{stb}, 16
    s_add_u32 s{sO}, s{sO}, s{sMo}
    s_add_u32 s{sO}, s{sO}, {WS_O}
    s_and_b32 s{sDB}, s{sxcd}, 1
    s_lshl_b32 s{sDB}, s{sDB}, 2
    s_and_b32 s{sT}, s{sloc}, 3
    s_add_u32 s{sDB}, s{sDB}, s{sT}
    s_lshr_b32 s{sT}, s{sxcd}, 1
    s_mul_i32 s{sNB}, s{sT}, 7
    s_lshr_b32 s{sT}, s{sloc}, 2
    s_min_u32 s{sT}, s{sT}, 6
    s_add_u32 s{sNB}, s{sNB}, s{sT}
    s_mul_i32 s{sWoff}, s{sw}, {512 * F * 2}
    s_lshl_b32 s{sT}, s{sNB}, 7
    s_add_u32 s{sWoff}, s{sWoff}, s{sT}
    s_lshl_b32 s{sStg}, s{sw}, 14
    v_lshlrev_b32 v11, 7, v10
    s_lshl_b32 s{sT3}, s{stb}, 12
    s_add_u32 s{sT3}, s{sT3}, {F2}
    """)
    wstream_addr(a, F * 2, VWA, VWR, 1024)
    a(f"v_add_u32 v{VWR}, s{sStg}, v{VWR}")
    a(f"v_add_u32 v{VWR+1}, {L_WO}, v{VWR}")
    w1 = WStream(a, W1, F * 2, sWoff, VWA, VWR, (1024, 256), "w1_")
    a.wait("wor")
    a("s_barrier")
    for k in range(8):
        w1.dma(k, sStg, L_WO + k * 2048)
    poll(a, 11, sT3, 12)
    st.mark(a, "p3_seen")
    for c in range(4):
        a(f"s_add_u32 m0, s{sMo}, {L_O + c * 8192}")
        if c:
            a(f"s_add_u32 s{sO}, s{sO}, 8192")
        for i in range(4):
            a(f"buffer_load_dwordx4 v2, s[{WS}:{WS+3}], s{sO} offen offset:{i*1024} sc1 lds", tag=f"o{c}")
        for k in (2*c, 2*c + 1):
            w1.read(k, VWR + 1, k * 2048)
    l = a.label("L_notag")
    a(f"""
    s_or_b32 s{sT}, s2, s{sw}
    s_cbranch_scc1 {l}
    s_mov_b32 s{sT}, {WS_NONCE}
    v_mov_b32 v12, s{sNON}
    v_mov_b32 v13, s{sNON+1}
    buffer_store_dwordx2 v[12:13], off, s[{WS}:{WS+3}], s{sT} sc1
    {l}:
    """)
    FR, NB = 16, 4
    ACC = 48
    XF = 64
    LAG = 3
    for n in range(32 + LAG):
        if n < 32:
            if n % 8 == 0:
                a.wait(f"o{n//8}", *(["xt"] if n == 0 else []))
                a("s_barrier")
            a(f"ds_read_b128 {vr(FR + 4*(n % NB),4)}, v3 offset:{L_O + n*1024}", tag="or")
        if n == 4:
            a(f"ds_read_b128 {vr(XF,4)}, v5")
            a(f"ds_read_b128 {vr(XF+4,4)}, v6")
        if n >= LAG:
            m = n - LAG
            a(f"v_mfma_f32_32x32x16_bf16 {vr(ACC,16)}, {vr(WF + 4*m,4)}, {vr(FR + 4*(m % NB),4)}, {'0' if m == 0 else vr(ACC,16)}")
    st.mark(a, "p3_loop")
    HP, T = 72, 16
    for i in range(8):
        a(f"v_lshlrev_b32 v{T+2*i}, 16, v{XF+i}")
        a(f"v_and_b32 v{T+2*i+1}, 0xffff0000, v{XF+i}")
    a(f"""
    s_lshl_b32 s{sST}, s{stb}, 1
    s_add_u32 s{sST}, s{sST}, s{stt}
    s_lshl_b32 s{sDT}, s{sdb}, 1
    s_add_u32 s{sDT}, s{sDT}, s{sdt}
    s_lshl_b32 s{sT}, s{sST}, 12
    s_add_u32 s{sT}, s{sT}, {WS_ST}
    s_lshl_b32 s{sT2}, s{sDT}, 8
    s_add_u32 s{sT2}, s{sT2}, s{sT}
    v_lshlrev_b32 v11, 3, v10
    """)
    for i in range(8):
        a(f"v_pk_add_f32 {vr(ACC+2*i,2)}, {vr(ACC+2*i,2)}, {vr(T+2*i,2)}")
    a(f"""
    v_pk_add_f32 {vr(T,2)}, {vr(ACC,2)}, {vr(ACC+2,2)}
    v_pk_add_f32 {vr(T+2,2)}, {vr(ACC+4,2)}, {vr(ACC+6,2)}
    v_pk_add_f32 {vr(T+4,2)}, {vr(ACC+8,2)}, {vr(ACC+10,2)}
    v_pk_add_f32 {vr(T+6,2)}, {vr(ACC+12,2)}, {vr(ACC+14,2)}
    v_pk_add_f32 {vr(T,2)}, {vr(T,2)}, {vr(T+2,2)}
    v_pk_add_f32 {vr(T+4,2)}, {vr(T+4,2)}, {vr(T+6,2)}
    v_pk_add_f32 {vr(T,2)}, {vr(T,2)}, {vr(T+4,2)}
    v_add_f32 v{T}, v{T}, v{T+1}
    v_mov_b32 v{T+1}, v{T}
    v_permlane32_swap_b32 v{T+1}, v{T}
    v_add_f32 v{T}, v{T}, v{T+1}
    v_mul_f32 v{T}, {f32(1.0/32)}, v{T}
    """)
    for i in range(8):
        a(f"v_pk_add_f32 {vr(T+2+2*i,2)}, {vr(ACC+2*i,2)}, {vr(T,2)} op_sel_hi:[1,0] neg_lo:[0,1] neg_hi:[0,1]")
    a(f"v_pk_mul_f32 {vr(T+18,2)}, {vr(T+2,2)}, {vr(T+2,2)}")
    a(f"v_pk_mul_f32 {vr(T+20,2)}, {vr(T+4,2)}, {vr(T+4,2)}")
    for i in range(2, 8):
        r = T + 18 + 2 * (i & 1)
        a(f"v_pk_fma_f32 {vr(r,2)}, {vr(T+2+2*i,2)}, {vr(T+2+2*i,2)}, {vr(r,2)}")
    a(f"""
    v_pk_add_f32 {vr(T+18,2)}, {vr(T+18,2)}, {vr(T+20,2)}
    v_add_f32 v{T+1}, v{T+18}, v{T+19}
    v_mov_b32 v{T+2}, v{T+1}
    v_permlane32_swap_b32 v{T+2}, v{T+1}
    v_add_f32 v{T+1}, v{T+1}, v{T+2}
    buffer_store_dwordx2 {vr(T,2)}, v11, s[{WS}:{WS+3}], s{sT2} offen sc1
    v_lshlrev_b32 v11, 3, v1
    """)
    for i in range(8):
        a(f"v_cvt_pk_bf16_f32 v{HP+i}, v{ACC+2*i}, v{ACC+2*i+1}")
    a(f"""
    s_lshl_b32 s{sO}, s{sST}, 15
    s_lshl_b32 s{sT2}, s{sDT}, 11
    s_add_u32 s{sO}, s{sO}, s{sT2}
    s_add_u32 s{sO}, s{sO}, {WS_H}
    """)
    a(f"buffer_store_dwordx4 {vr(HP,4)}, v2, s[{WS}:{WS+3}], s{sO} offen sc1", tag="st3")
    a(f"buffer_store_dwordx4 {vr(HP+4,4)}, v2, s[{WS}:{WS+3}], s{sO} offen offset:1024 sc1", tag="st3")
    a.wait("w1_r")
    for k in range(8, 16):
        w1.dma(k, sStg, L_WO + (k - 8) * 2048)
    a("s_barrier")
    P = 16
    a(f"""
    s_mov_b32 s{sCNT}, 0
    L_st_poll:
    """)
    for p in range(8):
        a(f"buffer_load_dwordx2 {vr(P+2*p,2)}, v11, s[{WS}:{WS+3}], s{sT} offen offset:{p*512} sc1")
    a(f"""
    v_max3_u32 v32, v{P}, v{P+1}, v{P+2}
    v_max3_u32 v33, v{P+3}, v{P+4}, v{P+5}
    v_max3_u32 v32, v{P+6}, v{P+7}, v32
    v_max3_u32 v33, v{P+8}, v{P+9}, v33
    v_max3_u32 v32, v{P+10}, v{P+11}, v32
    v_max3_u32 v33, v{P+12}, v{P+13}, v33
    v_max3_u32 v32, v{P+14}, v{P+15}, v32
    v_max_u32 v32, v32, v33
    v_cmp_eq_u32 vcc, -1, v32
    s_add_u32 s{sCNT}, s{sCNT}, 1
    s_cbranch_vccz L_st_got
    s_cmp_lt_u32 s{sCNT}, {SPIN}
    s_cbranch_scc1 L_st_poll
    L_st_got:
    """)
    st.mark(a, "p3_stats")
    a(f"""
    v_pk_add_f32 {vr(32,2)}, {vr(P,2)}, {vr(P+2,2)}
    v_pk_add_f32 {vr(34,2)}, {vr(P+4,2)}, {vr(P+6,2)}
    v_pk_add_f32 {vr(36,2)}, {vr(P+8,2)}, {vr(P+10,2)}
    v_pk_add_f32 {vr(38,2)}, {vr(P+12,2)}, {vr(P+14,2)}
    v_pk_add_f32 {vr(32,2)}, {vr(32,2)}, {vr(34,2)}
    v_pk_add_f32 {vr(36,2)}, {vr(36,2)}, {vr(38,2)}
    v_pk_add_f32 {vr(32,2)}, {vr(32,2)}, {vr(36,2)}
    v_mov_b32 v34, v32
    v_permlane32_swap_b32 v34, v32
    v_add_f32 v32, v32, v34
    v_mul_f32 v32, {f32(1.0/16)}, v32
    """)
    for p in range(8):
        a(f"v_sub_f32 v{P+2*p}, v{P+2*p}, v32")
    a(f"v_mul_f32 v34, v{P}, v{P}")
    a(f"v_mul_f32 v35, v{P+2}, v{P+2}")
    for p in range(2, 8):
        a(f"v_fmac_f32 v{34 + (p & 1)}, v{P+2*p}, v{P+2*p}")
    a(f"""
    v_add_f32 v34, v34, v35
    v_fmac_f32 v33, {f32(32.0)}, v34
    v_mov_b32 v34, v33
    v_permlane32_swap_b32 v34, v33
    v_add_f32 v33, v33, v34
    v_mul_f32 v33, {f32(1.0/D)}, v33
    v_add_f32 v34, {f32(EPS)}, v33
    v_rcp_f32 v35, v34
    v_rsq_f32 v34, v34
    v_mul_f32 v35, v33, v35
    v_add_f32 v35, {f32(EPS)}, v35
    v_rsq_f32 v35, v35
    s_lshl_b32 s{sT}, s{sw}, 11
    s_add_u32 s{sT}, s{sT}, {L_T}
    v_mul_f32 v34, v34, v35
    """)
    for i in range(8):
        a(f"v_pk_add_f32 {vr(ACC+2*i,2)}, {vr(ACC+2*i,2)}, {vr(32,2)} op_sel_hi:[1,0] neg_lo:[0,1] neg_hi:[0,1]")
    for i in range(8):
        a(f"v_pk_mul_f32 {vr(ACC+2*i,2)}, {vr(ACC+2*i,2)}, {vr(34,2)} op_sel_hi:[1,0]")
    for i in range(8):
        a(f"v_cvt_pk_bf16_f32 v{P+i}, v{ACC+2*i}, v{ACC+2*i+1}")
    a(f"""
    v_lshlrev_b32 v12, 6, v10
    v_lshl_add_u32 v12, v7, 4, v12
    v_add_u32 v12, s{sT}, v12
    ds_write_b128 v12, {vr(P,4)}
    ds_write_b128 v12, {vr(P+4,4)} offset:32
    v_lshlrev_b32 v13, 9, v7
    v_bfe_u32 v8, v1, 2, 2
    v_lshl_add_u32 v13, v8, 6, v13
    v_add3_u32 v13, v13, v9, s{sT}
    ds_read_b64_tr_b16 {vr(P+8,2)}, v13
    ds_read_b64_tr_b16 {vr(P+10,2)}, v13 offset:256
    ds_read_b64_tr_b16 {vr(P+12,2)}, v13 offset:1024
    ds_read_b64_tr_b16 {vr(P+14,2)}, v13 offset:1280
    s_lshl_b32 s{sO}, s{sDT}, 17
    s_lshl_b32 s{sT2}, s{sST}, 11
    s_add_u32 s{sO}, s{sO}, s{sT2}
    s_add_u32 s{sO}, s{sO}, {WS_Z}
    s_lshl_b32 s{sT3}, s{sdb}, 5
    s_add_u32 s{sT3}, s{sT3}, s{stb}
    s_lshl_b32 s{sT3}, s{sT3}, 2
    s_add_u32 s{sT3}, s{sT3}, s{sw}
    s_lshl_b32 s{sT3}, s{sT3}, 7
    s_add_u32 s{sT3}, s{sT3}, {F3}
    """)
    a(f"buffer_store_dwordx4 {vr(P+8,4)}, v2, s[{WS}:{WS+3}], s{sO} offen sc1", tag="st3")
    a(f"buffer_store_dwordx4 {vr(P+12,4)}, v2, s[{WS}:{WS+3}], s{sO} offen offset:1024 sc1", tag="st3")
    for k in range(16, 21):
        w1.dma(k, sStg, L_O + (k - 16) * 2048)
    signal(a, sT3, ["st3"], 32)
    st.mark(a, "p3_sig")
    for k in range(21, 24):
        w1.dma(k, sStg, L_O + (k - 16) * 2048)
    for k in range(8, 16):
        w1.read(k, VWR + 1, (k - 8) * 2048)
    a.wait("w1_r")
    for k in range(24, 32):
        w1.dma(k, sStg, L_WO + (k - 24) * 2048)
    for k in range(16, 24):
        w1.read(k, VWR, L_O + (k - 16) * 2048)
    return w1


DEPTH = 12
AF = 96
ACC4 = 32
FIN, EP = 16, 200
L_RED = 114688


def gemm_loop(a, which, KS, sAoff, tail):
    def issue(k):
        s = k % DEPTH
        if k and k % 4 == 0:
            a(f"s_add_u32 s{sAoff}, s{sAoff}, 4096")
        a(f"buffer_load_dwordx4 {vr(AF + 8*s, 4)}, v2, s[{WS}:{WS+3}], s{sAoff} offen offset:{(k % 4) * 1024} sc1")
        return f"buffer_load_dwordx4 {vr(AF + 8*s + 4, 4)}, v3, s[{WS}:{WS+3}], s{sAoff} offen offset:{(k % 4) * 1024} sc1"

    def pre():
        for k in range(DEPTH - 1):
            a(issue(k))

    def loop():
        for k in range(KS):
            s = AF + 8 * (k % DEPTH)
            second = None
            for i, (dt, nt) in enumerate(((0, 0), (0, 1), (1, 0), (1, 1))):
                acc = vr(ACC4 + 16 * (2*nt + dt), 16)
                wf, af = ar(8*k + 4*nt, 4), vr(s + 4*dt, 4)
                A, B = (wf, af) if which == 1 else (af, wf)
                a(f"v_mfma_f32_32x32x16_bf16 {acc}, {A}, {B}, {'0' if k == 0 else acc}")
                if i == 0:
                    if k + DEPTH - 1 < KS:
                        second = issue(k + DEPTH - 1)
                    else:
                        tail(k + DEPTH - 1 - KS)
                if i == 2 and second:
                    a(second)
    return pre, loop


def reduce4(a):
    ends = a.label("L_red_done")
    labs = [a.label("L_red") for _ in range(4)]
    a(f"v_add_u32 v9, {L_RED}, v2")
    for w in range(1, 4):
        a(f"s_cmp_eq_u32 s{sw}, {w}")
        a(f"s_cbranch_scc1 {labs[w]}")
    for w in range(4):
        a(f"{labs[w]}:")
        for j in range(1, 4):
            t = (w + j) & 3
            for q in range(4):
                a(f"ds_write_b128 v9, {vr(ACC4 + 16*t + 4*q, 4)} offset:{(t*3 + j - 1) * 4096 + q * 1024}", tag="red")
        for i in range(8):
            a(f"v_pk_add_f32 {vr(FIN + 2*i, 2)}, {vr(FIN + 2*i, 2)}, {vr(ACC4 + 16*w + 2*i, 2)}")
        if w < 3:
            a(f"s_branch {ends}")
    a(f"{ends}:")
    a(f"s_mul_i32 s{sT}, s{sw}, 12288")
    a(f"v_add_u32 v9, s{sT}, v9")
    a.wait("red")
    a("s_barrier")
    for j in range(3):
        for q in range(4):
            a(f"ds_read_b128 {vr(ACC4 + 16*j + 4*q, 4)}, v9 offset:{j * 4096 + q * 1024}")
    for j in range(3):
        for i in range(8):
            a(f"v_pk_add_f32 {vr(FIN + 2*i, 2)}, {vr(FIN + 2*i, 2)}, {vr(ACC4 + 16*j + 2*i, 2)}")


def stage45(a, st, w1):
    sAoff, sNT, sDT, sSB, sW2, sStg2 = sA[:6]
    a(f"""
    s_mul_i32 s{sAoff}, s{sDB}, {2 * 131072}
    s_lshl_b32 s{sT}, s{sw}, 15
    s_add_u32 s{sAoff}, s{sAoff}, s{sT}
    s_add_u32 s{sAoff}, s{sAoff}, {WS_Z}
    v_add_u32 v3, 131072, v2
    s_lshr_b32 s{sT}, s{sw}, 1
    s_lshl_b32 s{sNT}, s{sNB}, 1
    s_add_u32 s{sNT}, s{sNT}, s{sT}
    s_and_b32 s{sT}, s{sw}, 1
    s_lshl_b32 s{sDT}, s{sDB}, 1
    s_add_u32 s{sDT}, s{sDT}, s{sT}
    s_lshr_b32 s{sT}, s{sxcd}, 1
    s_lshl_b32 s{sSB}, s{sT}, 3
    s_lshr_b32 s{sT}, s{sloc}, 2
    s_add_u32 s{sSB}, s{sSB}, s{sT}
    s_mul_i32 s{sW2}, s{sw}, {448 * S * 2}
    s_lshl_b32 s{sT}, s{sSB}, 7
    s_add_u32 s{sW2}, s{sW2}, s{sT}
    s_mul_i32 s{sStg2}, s{sw}, 28672
    s_lshl_b32 s{sT}, s{sNT}, 6
    v_lshlrev_b32 v10, 3, v7
    """)
    for q in range(4):
        a(f"buffer_load_dwordx2 {vr(EP + 2*q, 2)}, v10, s[{B1}:{B1+3}], s{sT} offen offset:{16*q}")
    a(f"""
    s_lshl_b32 s{sT3}, s{sDB}, 2
    s_add_u32 s{sT3}, s{sT3}, s{sw}
    s_lshl_b32 s{sT3}, s{sT3}, 12
    s_add_u32 s{sT3}, s{sT3}, {F3}
    v_and_b32 v11, 31, v1
    v_lshlrev_b32 v11, 7, v11
    """)
    for k in range(24, 32):
        w1.read(k, VWR + 1, (k - 24) * 2048)
    V2A, V2R = 248, 250
    wstream_addr(a, S * 2, V2A, V2R, 256)
    a(f"v_add_u32 v{V2R}, s{sStg2}, v{V2R}")
    w2 = WStream(a, W2, S * 2, sW2, V2A, V2R, (256, 1024), "w2_")
    for q in range(4):
        for e in range(2):
            a(f"v_lshlrev_b32 v{FIN + 4*q + 2*e}, 16, v{EP + 2*q + e}")
            a(f"v_and_b32 v{FIN + 4*q + 2*e + 1}, 0xffff0000, v{EP + 2*q + e}")
    a.wait("w1_r")
    a("s_barrier")
    a(f"s_lshr_b32 s{sT}, s{sloc}, 2")
    a(f"s_cmp_eq_u32 s{sT}, 7")
    a("s_cbranch_scc1 L_idle4")
    poll(a, 11, sT3, 12)
    st.mark(a, "p4_seen")
    def tail4(i):
        for k in ([i] if i < 8 else [2*i - 8, 2*i - 7]):
            w2.dma(k, sStg2, k * 2048)
    pre, loop = gemm_loop(a, 1, 32, sAoff, tail4)
    pre()
    loop()
    st.mark(a, "p4_loop")
    reduce4(a)
    T = 96
    c0 = -2.0 * 0.7978845608028654 * LOG2E
    a(f"v_mov_b32 v10, {f32(c0 * 0.044715)}")
    a(f"v_mov_b32 v12, {f32(c0)}")
    for i in range(8):
        a(f"v_pk_mul_f32 {vr(T + 2*i, 2)}, {vr(FIN + 2*i, 2)}, {vr(FIN + 2*i, 2)}")
    for i in range(8):
        a(f"v_pk_fma_f32 {vr(T + 2*i, 2)}, {vr(T + 2*i, 2)}, v[10:11], v[12:13] op_sel_hi:[1,0,0]")
    for i in range(8):
        a(f"v_pk_mul_f32 {vr(T + 2*i, 2)}, {vr(T + 2*i, 2)}, {vr(FIN + 2*i, 2)}")
    for i in range(16):
        a(f"v_exp_f32 v{T+i}, v{T+i}")
    for i in range(8):
        a(f"v_pk_add_f32 {vr(T + 2*i, 2)}, {vr(T + 2*i, 2)}, 1.0 op_sel_hi:[1,0]")
    for i in range(16):
        a(f"v_rcp_f32 v{T+i}, v{T+i}")
    for i in range(8):
        a(f"v_pk_mul_f32 {vr(FIN + 2*i, 2)}, {vr(FIN + 2*i, 2)}, {vr(T + 2*i, 2)}")
    for i in range(8):
        a(f"v_cvt_pk_bf16_f32 v{T+i}, v{FIN + 2*i}, v{FIN + 2*i + 1}")
    a(f"""
    s_mul_i32 s{sT}, s{sDT}, {112 * 1024}
    s_lshl_b32 s{sT2}, s{sNT}, 11
    s_add_u32 s{sT}, s{sT}, s{sT2}
    s_add_u32 s{sT}, s{sT}, {WS_G}
    s_mul_i32 s{sT3}, s{sDB}, 28
    s_add_u32 s{sT3}, s{sT3}, s{sNB}
    s_lshl_b32 s{sT3}, s{sT3}, 2
    s_add_u32 s{sT3}, s{sT3}, s{sw}
    s_lshl_b32 s{sT3}, s{sT3}, 7
    s_add_u32 s{sT3}, s{sT3}, {F4}
    """)
    a(f"buffer_store_dwordx4 {vr(T,4)}, v2, s[{WS}:{WS+3}], s{sT} offen sc1", tag="st4")
    a(f"buffer_store_dwordx4 {vr(T+4,4)}, v2, s[{WS}:{WS+3}], s{sT} offen offset:1024 sc1", tag="st4")
    for k in range(14):
        w2.read(k, V2R, k * 2048)
    signal(a, sT3, ["st4"], 12)
    a("s_branch L_join5")
    a(f"""
    L_idle4:
    s_and_b32 s{sT}, s{sloc}, 3
    s_lshl_b32 s{sT}, s{sT}, 2
    s_add_u32 s{sT}, s{sT}, s{sw}
    s_mul_i32 s{sT}, s{sT}, {112 * S * 2}
    s_lshr_b32 s{sT2}, s{sxcd}, 1
    s_lshl_b32 s{sT2}, s{sT2}, 10
    s_add_u32 s{sT}, s{sT}, s{sT2}
    v_lshrrev_b32 v12, 3, v1
    v_lshlrev_b32 v12, 12, v12
    v_and_b32 v13, 7, v1
    v_lshl_add_u32 v12, v13, 7, v12
    """)
    for i in range(OPT["idle_pf"]):
        a(f"buffer_load_dword v13, v12, s[{W2}:{W2+3}], s{sT} offen")
        a(f"s_add_u32 s{sT}, s{sT}, {8 * S * 2}")
    for k in range(14):
        w2.dma(k, sStg2, k * 2048)
    for k in range(14):
        w2.read(k, V2R, k * 2048)
    a("L_join5:")
    st.mark(a, "p4_sig")
    a.wait("w2_r")
    for k in range(14, 28):
        w2.dma(k, sStg2, (k - 14) * 2048)
    a(f"""
    s_mul_i32 s{sAoff}, s{sDB}, {2 * 114688}
    s_mul_i32 s{sT}, s{sw}, 28672
    s_add_u32 s{sAoff}, s{sAoff}, s{sT}
    s_add_u32 s{sAoff}, s{sAoff}, {WS_G}
    v_add_u32 v3, 114688, v2
    s_lshr_b32 s{sT}, s{sw}, 1
    s_lshl_b32 s{sNT}, s{sSB}, 1
    s_add_u32 s{sNT}, s{sNT}, s{sT}
    s_lshl_b32 s{sT3}, s{sDB}, 2
    s_add_u32 s{sT3}, s{sT3}, s{sw}
    s_mul_i32 s{sT3}, s{sT3}, {28 * 128}
    s_add_u32 s{sT3}, s{sT3}, {F4}
    v_min_u32 v11, 27, v1
    v_lshlrev_b32 v11, 7, v11
    s_lshl_b32 s{sT}, s{sNT}, 6
    v_and_b32 v10, 31, v1
    v_lshlrev_b32 v14, 1, v10
    buffer_load_ushort v{EP+8}, v14, s[{B2}:{B2+3}], s{sT} offen
    """)
    poll(a, 11, sT3, 12)
    st.mark(a, "p5_seen")
    def tail5(i):
        if i == 0:
            a(f"""
            s_lshl_b32 s{sT}, s{sNT}, 15
            s_lshl_b32 s{sT2}, s{sDT}, 11
            s_add_u32 s{sT}, s{sT}, s{sT2}
            s_add_u32 s{sT}, s{sT}, {WS_H}
            buffer_load_dwordx4 {vr(EP,4)}, v2, s[{WS}:{WS+3}], s{sT} offen sc1
            buffer_load_dwordx4 {vr(EP+4,4)}, v2, s[{WS}:{WS+3}], s{sT} offen offset:1024 sc1
            """)
    pre, loop = gemm_loop(a, 2, 28, sAoff, tail5)
    pre()
    for k in range(14, 28):
        w2.read(k, V2R, (k - 14) * 2048)
    loop()
    st.mark(a, "p5_loop")
    a(f"v_lshlrev_b32 v{EP+8}, 16, v{EP+8}")
    for i in range(8):
        a(f"v_lshlrev_b32 v{FIN + 2*i}, 16, v{EP + i}")
        a(f"v_and_b32 v{FIN + 2*i + 1}, 0xffff0000, v{EP + i}")
    for i in range(16):
        a(f"v_add_f32 v{FIN + i}, v{FIN + i}, v{EP+8}")
    a("s_barrier")
    reduce4(a)
    for i in range(8):
        a(f"v_cvt_pk_bf16_f32 v{T+i}, v{FIN + 2*i}, v{FIN + 2*i + 1}")
    a(f"""
    s_lshl_b32 s{sT}, s{sNT}, 15
    s_lshl_b32 s{sT2}, s{sDT}, 6
    s_add_u32 s{sT}, s{sT}, s{sT2}
    v_lshlrev_b32 v10, 10, v10
    v_lshl_add_u32 v10, v7, 4, v10
    buffer_store_dwordx4 {vr(T,4)}, v10, s[{OUT}:{OUT+3}], s{sT} offen
    buffer_store_dwordx4 {vr(T+4,4)}, v10, s[{OUT}:{OUT+3}], s{sT} offen offset:32
    """)


def gen(stamp=False, diag=None):
    a, slow = Asm(), Asm()
    st = RT(stamp)
    late = prologue(a, st)
    stage1(a, st, late)
    stage2(a, st, slow)
    w1 = stage3(a, st)
    stage45(a, st, w1)
    if stamp:
        a("s_waitcnt vmcnt(0)")
        st.mark(a, "end")
        if diag is None:
            st.flush(a)
        else:
            i = st.names.index(diag)
            a(f"""
            s_waitcnt lgkmcnt(0)
            s_add_u32 s{sT}, s{64 + 2*i}, 7000
            L_diag:
            s_memrealtime s[62:63]
            s_waitcnt lgkmcnt(0)
            s_sub_u32 s{sT2}, s62, s{sT}
            s_cmp_lt_i32 s{sT2}, 0
            s_cbranch_scc1 L_diag
            """)
    a("L_end:")
    a("s_endpgm")
    a.ins += slow.ins
    return a, st.names


def text(stamp=False, diag=None):
    a, names = gen(stamp, diag)
    header = open(f"cdna_kernels/{NAME}.s.ref").read().split("; Override launch")[0]
    k = NAME + "_kernel"
    s = header + f"; @launch grid=(256,1,1) block=(256,1,1) lds={LDS}\n"
    if stamp:
        s += "; stamps: " + " ".join(names) + "\n"
    s += '.amdgcn_target "amdgcn-amd-amdhsa--gfx950"\n.text\n'
    s += kernel_text(k, a)
    s += 'L_code_end:\n.section .rodata,"a"\n'
    s += kernel_desc(k, a)
    return s


if __name__ == "__main__":
    open("mega.s", "w").write(text(False))
    open("mega_st.s", "w").write(text(True))
    print("ok")
```

```python
import mega, re
from common import *
N = mega.NAME + "_kernel"
base = mega.text(False)
line = f"; @launch grid=(256,1,1) block=(256,1,1) lds={mega.LDS}\n"
A = base.replace(line, f"; @launch kernel={N} grid=(256,1,1) block=(256,1,1) lds={mega.LDS}\n")
open("t_a.s","w").write(A)
e = Asm(); e("s_endpgm")
B = base.replace(line, f"; @launch kernel=empty_kernel grid=(8,1,1) block=(64,1,1) lds=0\n; @launch kernel={N} grid=(256,1,1) block=(256,1,1) lds={mega.LDS}\n")
B = B.replace("L_code_end:\n", "L_code_end:\n" + kernel_text("empty_kernel", e)) + kernel_desc("empty_kernel", e)
open("t_b.s","w").write(B)
C = re.sub(r"(buffer_store_dwordx4 .* s\[36:39\], .*)", r"\1 sc1", base)
open("t_c.s","w").write(C)
d = mega.text(True, "start")
for nm, wg in (("d", 0), ("e", 255)):
    open(f"t_{nm}.s","w").write(d.replace("L_diag:\n", f"    s_cmp_lg_u32 s2, {wg}\n    s_cbranch_scc1 L_end\nL_diag:\n"))
open("t_f.s","w").write(base)
```

```python
import re

TRANS = ("v_exp_", "v_log_", "v_rcp_", "v_rsq_", "v_sqrt_", "v_sin_", "v_cos_")
REG = re.compile(r"(?<![\w.])([vas])(?:\[(\d+):(\d+)\]|(\d+))(?![\w])")


def regs_of(tok):
    out = []
    for m in REG.finditer(tok):
        k = m.group(1)
        if m.group(4) is not None:
            out.append((k, int(m.group(4))))
        else:
            out += [(k, i) for i in range(int(m.group(2)), int(m.group(3)) + 1)]
    t = tok.strip()
    if re.search(r"\bvcc\b", t):
        out.append(("s", "vcc"))
    if re.search(r"\bexec\b", t):
        out.append(("s", "exec"))
    if re.search(r"\bm0\b", t):
        out.append(("s", "m0"))
    return out


def split_ops(s):
    ops, depth, cur = [], 0, ""
    for ch in s:
        if ch in "[(":
            depth += 1
        if ch in "])":
            depth -= 1
        if ch == "," and depth == 0:
            ops.append(cur.strip())
            cur = ""
        else:
            cur += ch
    if cur.strip():
        ops.append(cur.strip())
    return ops


class Inst:
    def __init__(self, text, tag=None, needs=()):
        self.text = text
        self.tag = tag
        self.needs = tuple(needs)
        self.label = None
        self.pseudo = False
        self.w_vm = None
        self.w_lgkm = None
        self.nop = 0
        t = text.split(";")[0].strip()
        if t.endswith(":"):
            self.label = t[:-1]
            self.pseudo = True
            self.op = ""
            self.kind = "label"
            self.dst = self.src = ()
            return
        if t == "" or t.startswith("."):
            self.pseudo = True
            self.op = ""
            self.kind = "pseudo"
            self.dst = self.src = ()
            return
        parts = t.split(None, 1)
        op = self.op = parts[0]
        ops = split_ops(parts[1]) if len(parts) > 1 else []
        self.ops = ops
        R = [regs_of(o) for o in ops]
        allr = [r for x in R for r in x]
        dst, src = [], []
        self.srcA = self.srcB = self.srcC = ()
        self.passes = 0
        if op.startswith("v_mfma") or op.startswith("v_smfmac"):
            self.kind = "mfma"
            self.passes = 8 if "32x32" in op else 4
            dst = R[0]
            self.srcA, self.srcB = tuple(R[1]), tuple(R[2])
            if op.startswith("v_smfmac"):
                self.srcC = tuple(R[0])
                self.srcB = self.srcB + tuple(R[3])
            else:
                self.srcC = tuple(R[3])
            src = list(self.srcA + self.srcB + self.srcC)
        elif op.startswith("v_"):
            self.kind = "valu"
            if op.startswith("v_permlane") and "swap" in op:
                dst = R[0] + R[1]
                src = R[0] + R[1]
            elif op.startswith("v_cmpx"):
                dst = R[0] + [("s", "exec")]
                src = [r for x in R[1:] for r in x]
            elif op.startswith(("v_add_co", "v_sub_co", "v_addc_co", "v_subb_co", "v_div_scale", "v_mad_u64")):
                dst = R[0] + R[1]
                src = [r for x in R[2:] for r in x]
            elif op == "v_nop":
                pass
            else:
                dst = R[0]
                src = [r for x in R[1:] for r in x]
                if op.startswith(("v_fmac", "v_dot2c", "v_pk_fmac", "v_writelane")) or "dst_unused:UNUSED_PRESERVE" in t:
                    src = src + R[0]
                if "_dpp" in op or "row_" in t or "quad_perm" in t:
                    src = src + R[0]
        elif op.startswith(("buffer_", "global_")):
            self.kind = "vmem"
            lds = re.search(r"\blds\b", t) or "load_lds" in op
            if op.startswith(("buffer_inv", "buffer_wbl2")):
                pass
            elif "load" in op and not lds:
                dst = R[0]
                src = [r for x in R[1:] for r in x]
            elif "atomic" in op and re.search(r"\bsc0\b", t):
                dst = R[0]
                src = allr
            else:
                src = allr
                if lds:
                    src = src + [("s", "m0")]
            self.lds_dma = bool(lds)
            self.wide_store = ("store" in op) and op.endswith(("x3", "x4"))
            if self.wide_store:
                self.store_data = tuple(R[0] if op.startswith("buffer_") else R[1])
        elif op.startswith("ds_"):
            self.kind = "ds"
            if op.startswith(("ds_read", "ds_bpermute", "ds_permute", "ds_swizzle")) or "_rtn" in op:
                dst = R[0]
                src = [r for x in R[1:] for r in x]
            else:
                src = allr
        elif op.startswith(("s_load", "s_buffer_load", "s_memtime", "s_memrealtime")):
            self.kind = "smem"
            dst = R[0]
            src = [r for x in R[1:] for r in x]
        elif op.startswith("s_"):
            self.kind = "salu"
            if op.startswith(("s_cmp", "s_bitcmp", "s_cbranch", "s_branch", "s_waitcnt", "s_nop", "s_barrier", "s_endpgm",
                              "s_setprio", "s_sleep", "s_setpc", "s_setreg")):
                src = allr
                if op.startswith("s_cbranch_vcc"):
                    src = src + [("s", "vcc")]
                if op.startswith("s_cbranch_exec"):
                    src = src + [("s", "exec")]
            else:
                dst = R[0]
                src = [r for x in R[1:] for r in x]
                if "saveexec" in op:
                    dst = dst + [("s", "exec")]
                    src = src + [("s", "exec")]
                if op.startswith(("s_addk", "s_mulk", "s_cmov", "s_bitset")):
                    src = src + R[0]
        else:
            raise ValueError("unknown instruction: " + text)
        self.dst, self.src = tuple(dst), tuple(src)
        self.trans = op.startswith(TRANS)
        self.dot = op.startswith("v_dot")
        self.dpp = self.kind == "valu" and ("_dpp" in op or "row_" in t or "quad_perm" in t)


XDL_VALU = {4: 8, 8: 12}
XDL_OVERLAP = {4: 6, 8: 10}
XDL_WAR = {4: 3, 8: 7}
HIST = 14


def need_states(p, c):
    n = 0
    pd = set(p.dst)
    cs, cd = set(c.src), set(c.dst)
    if p.kind == "valu":
        vd = {r for r in pd if r[0] in "va"}
        sd = {r for r in pd if r[0] == "s"}
        if c.kind == "mfma" and vd & cs:
            n = max(n, 3 if p.dot else 2)
        if c.kind == "mfma" and ("s", "exec") in sd:
            n = max(n, 4)
        if c.kind == "valu":
            if p.trans and not c.trans and vd & cs:
                n = max(n, 1)
            if c.op.startswith(("v_readlane", "v_readfirstlane")) and vd & cs:
                n = max(n, 1)
            if c.op.startswith("v_permlane") and vd & cs:
                n = max(n, 2)
            if c.dpp and vd & cs:
                n = max(n, 2)
            if c.dpp and ("s", "exec") in sd:
                n = max(n, 5)
            if sd & cs:
                n = max(n, 4 if c.op.startswith(("v_readlane", "v_writelane", "v_div_fmas")) else 2)
            if ("s", "exec") in sd and c.op.startswith(("v_readlane", "v_readfirstlane", "v_writelane", "v_permlane")):
                n = max(n, 4)
            if ("sdwa" in p.op or "op_sel" in p.text and not p.op.startswith("v_pk_")) and vd & (cs | cd):
                n = max(n, 1)
        if p.dot and (vd & (cs | cd)):
            if not (c.op == p.op and not (vd & set(r for o in c.ops[1:3] for r in regs_of(o)))):
                n = max(n, 3)
        if c.kind == "vmem" and sd & cs:
            n = max(n, 5)
        if c.kind in ("salu", "smem") and sd & cs:
            n = max(n, 5 if c.op.startswith(("s_cbranch_vcc", "s_cbranch_exec")) else 1)
    elif p.kind == "mfma":
        if c.kind == "mfma":
            if pd & set(c.srcA + c.srcB):
                n = max(n, XDL_VALU[p.passes])
            if pd & set(c.srcC):
                if not (tuple(p.dst) == tuple(c.srcC) and p.passes == c.passes):
                    n = max(n, XDL_OVERLAP[p.passes])
            elif pd & cd:
                n = max(n, XDL_OVERLAP[p.passes])
        elif c.kind in ("valu", "vmem", "ds"):
            if pd & (cs | cd):
                n = max(n, XDL_VALU[p.passes])
            if c.kind == "valu" and set(p.srcC) & cd:
                n = max(n, XDL_WAR[p.passes])
    elif p.kind == "salu":
        if ("s", "m0") in pd and c.kind == "vmem" and c.lds_dma:
            n = max(n, 1)
    elif p.kind == "vmem":
        if p.wide_store and set(p.store_data) & cd:
            n = max(n, 2 if c.kind == "valu" else 1)
    return n


class Asm:
    uid = 0

    def __init__(self):
        self.ins = []

    def __call__(self, text, tag=None, needs=()):
        lines = [l.strip() for l in text.strip().split("\n")]
        for l in lines:
            if l == "" or l.startswith(";"):
                continue
            self.ins.append(Inst(l, tag, needs))

    def wait(self, *tags):
        i = Inst("", None, tags)
        i.kind = "waitpt"
        self.ins.append(i)

    def raw(self, text):
        for l in text.strip().split("\n"):
            i = Inst("")
            i.text = l.strip()
            self.ins.append(i)

    def label(self, base):
        Asm.uid += 1
        return f"{base}_{Asm.uid}"

    def _explore(self):
        ins = self.ins
        lab = {x.label: i for i, x in enumerate(ins) if x.label}
        changed = False
        seen = set()
        stack = [(0, (), (), ())]
        steps = 0
        while stack:
            pc, vm, lg, hist = stack.pop()
            while pc < len(ins):
                x = ins[pc]
                steps += 1
                if steps > 3_000_000:
                    raise RuntimeError("path explosion")
                if x.kind == "label":
                    key = (pc, vm, lg, hist)
                    if key in seen:
                        break
                    seen.add(key)
                    pc += 1
                    continue
                if x.kind == "pseudo":
                    pc += 1
                    continue
                touch = set(x.src) | set(("tag", t) for t in x.needs)
                wr = set(x.dst)
                nv = None
                for k, e in enumerate(vm):
                    hit = e & touch or (e & wr and x.kind != "vmem")
                    if hit:
                        nv = len(vm) - 1 - k
                nl = None
                smem_pending = any(("smem", 0) in e for e in lg)
                for k, e in enumerate(lg):
                    hit = e & touch or (e & wr and not (x.kind == "ds" and not smem_pending))
                    if hit:
                        nl = 0 if smem_pending else len(lg) - 1 - k
                if nv is not None:
                    nv = min(nv, 62)
                    if x.w_vm is None or nv < x.w_vm:
                        x.w_vm = nv
                        changed = True
                if nl is not None:
                    nl = min(nl, 14)
                    if x.w_lgkm is None or nl < x.w_lgkm:
                        x.w_lgkm = nl
                        changed = True
                extra = 0
                if x.w_vm is not None or x.w_lgkm is not None:
                    extra = 1
                    if x.w_vm is not None:
                        vm = vm[max(0, len(vm) - x.w_vm):]
                    if x.w_lgkm is not None:
                        if x.w_lgkm == 0 or not smem_pending:
                            lg = lg[max(0, len(lg) - x.w_lgkm):]
                if x.kind == "waitpt":
                    if extra:
                        hist = tuple((a + 1, i) for a, i in hist if a + 1 < HIST)
                    pc += 1
                    continue
                need = 0
                for age, idx in hist:
                    n = need_states(ins[idx], x)
                    if n > age + extra:
                        need = max(need, n - age - extra)
                if need > x.nop:
                    x.nop = need
                    changed = True
                adv = extra + x.nop + 1
                if x.op == "s_nop":
                    adv += int(x.ops[0], 0)
                hist = tuple((a + adv, i) for a, i in hist if a + adv < HIST)
                if x.kind in ("valu", "mfma") or (x.kind == "salu" and ("s", "m0") in x.dst) or (x.kind == "vmem" and x.wide_store):
                    hist = hist + ((0, pc),)
                if x.op == "s_waitcnt":
                    m = re.search(r"vmcnt\((\d+)\)", x.text)
                    if m:
                        vm = vm[max(0, len(vm) - int(m.group(1))):]
                    m = re.search(r"lgkmcnt\((\d+)\)", x.text)
                    if m:
                        n = int(m.group(1))
                        if n == 0 or not smem_pending:
                            lg = lg[max(0, len(lg) - n):]
                tg = {("tag", x.tag)} if x.tag else set()
                if x.kind == "vmem":
                    vm = vm + (frozenset(set(x.dst) | tg),)
                    if len(vm) > 63:
                        vm = vm[-64:]
                elif x.kind == "ds":
                    lg = lg + (frozenset(set(x.dst) | tg),)
                elif x.kind == "smem":
                    lg = lg + (frozenset(set(x.dst) | tg | {("smem", 0)}),)
                while vm and not vm[0]:
                    vm = vm[1:]
                while lg and not lg[0]:
                    lg = lg[1:]
                if x.op == "s_endpgm":
                    break
                if x.op == "s_branch":
                    pc = lab[x.ops[0]]
                    continue
                if x.op.startswith("s_cbranch"):
                    stack.append((lab[x.ops[0]], vm, lg, hist))
                pc += 1
        return changed

    def finalize(self):
        for _ in range(50):
            if not self._explore():
                break
        else:
            raise RuntimeError("no fixpoint")
        out = []
        for x in self.ins:
            w = []
            if x.w_vm is not None:
                w.append(f"vmcnt({x.w_vm})")
            if x.w_lgkm is not None:
                w.append(f"lgkmcnt({x.w_lgkm})")
            if w:
                out.append("    s_waitcnt " + " ".join(w))
            n = x.nop
            while n > 0:
                k = min(n, 16)
                out.append(f"    s_nop {k - 1}")
                n -= k
            if x.kind == "waitpt":
                continue
            out.append(x.text if x.label else "    " + x.text)
        return "\n".join(out)

    def max_regs(self):
        mx = {"v": -1, "a": -1, "s": -1}
        for x in self.ins:
            for k, i in tuple(x.dst) + tuple(x.src):
                if isinstance(i, int):
                    mx[k] = max(mx[k], i)
        return mx


def kernel_text(name, a):
    return f""".globl {name}
.p2align 8
.type {name},@function
{name}:
{a.finalize()}
"""


def kernel_desc(name, a, min_vgpr=0):
    mx = a.max_regs()
    nv = max(mx["v"] + 1, 4)
    acc = (nv + 3) // 4 * 4
    tot = acc + mx["a"] + 1 if mx["a"] >= 0 else nv
    tot = max(tot, min_vgpr)
    assert acc <= 256 and tot <= 512, (name, mx)
    return f""".p2align 6
.amdhsa_kernel {name}
  .amdhsa_next_free_vgpr {tot}
  .amdhsa_next_free_sgpr {max(mx['s'] + 1, 16)}
  .amdhsa_accum_offset {acc}
  .amdhsa_group_segment_fixed_size 0
  .amdhsa_kernarg_size 88
  .amdhsa_user_sgpr_count 2
  .amdhsa_user_sgpr_kernarg_segment_ptr 1
  .amdhsa_system_sgpr_workgroup_id_x 1
.end_amdhsa_kernel
"""
```

```python
from common import *

NAME = "sequential_preLN__softmax_full_mha__mixer_token_mlp__prompt"
LDS = 163840
OPT = dict(idle_pf=0, w2nt="", unroll=False, cyc=None, p1_pre=3, pads='p1', ftouch=True, rot=True, w1_start=2, w1_step0=4, w1_resume=29, w1_step=3, w2t0=60,
           skip=('p1_issued', 'p1_stored', 'p2_go', 'p3_loop', 'p2_sig', 'p3_sig', 'p3_stf'), w2a=4, w2a_at=22, w2b=6, stflag=False, pbar=False, pbar3=False, depth=8, w2tail=7, w2d=7, sig2_at=12, umarks=(), only=None)

X, WQ, WS, WO, W1, W2, B1, B2, OUT = 4, 8, 12, 16, 20, 24, 28, 32, 36
sw, sxcd, sloc, sNON = 40, 41, 42, 44
sT, sT2, sT3, sCNT = 46, 47, 48, 49
sA = list(range(50, 62))
F1, F2, F3, F4, F5 = (WS_FL + i * 16384 for i in range(5))
WS_NONCE = WS_ST + 262144
SPIN = 0x20000

L_KV_K, L_KV_V = 0, 16384
VGRP = 4096 + 32
L_W1 = 33024
L_O = 0
L_WO = 90112
L_X = 155648
L_T = L_X
L_RED = 0
L_W2 = 49152
sDB, sNB, sSB, sR4, sR5 = 43, 96, 97, 98, 99
VB1, VB2, V2A, V2R = 240, 248, 250, 252


class RT:
    def __init__(self, on):
        self.on, self.n, self.names = on, 0, []


    def mark(self, a, name):
        if self.on and (name in OPT['only'] or name[0] == 'u' if OPT['only'] else name not in OPT['skip']):
            assert self.n < 14
            a(f"{'s_memtime' if OPT['cyc'] else 's_memrealtime'} s[{64 + 2*self.n}:{65 + 2*self.n}]")
            self.n += 1
            self.names.append(name)

    def flush(self, a):
        if not self.on:
            return
        a(f"s_lshl2_add_u32 s{sT}, s2, s{sw}")
        a(f"s_lshl_b32 s{sT}, s{sT}, 6")
        a(f"s_add_u32 s{sT}, s{sT}, {WS_STAMP}")
        a("v_mov_b32 v4, 0")
        for i in range(self.n):
            a(f"v_mov_b32 v5, s{64 + 2*i}")
            a(f"buffer_store_dword v5, v4, s[{WS}:{WS+3}], s{sT} offen offset:{4*i}")


FLINE = 128
FREP = 32 * FLINE
VREP, VFL = 254, 255


def signal(a, soff, tags, vt, wg=False, copies=4):
    a(f"v_mov_b32 v{vt}, s{sNON}")
    a(f"v_mov_b32 v{vt+1}, s{sNON+1}")
    if wg:
        l = a.label("L_nosig")
        a(f"s_cmp_lg_u32 s{sw}, 0")
    a.wait(*tags)
    if wg:
        a("s_barrier")
        a(f"s_cbranch_scc1 {l}")
    a(f"s_mov_b64 exec, {(1 << copies) - 1}")
    a(f"buffer_atomic_swap_x2 {vr(vt,2)}, v{VREP}, s[{WS}:{WS+3}], s{soff} offen sc1")
    a("s_mov_b64 exec, -1")
    if wg:
        a(f"{l}:")


def poll(a, soff, vt, nlanes):
    l, d = a.label("L_poll"), a.label("L_seen")
    a(f"""
    s_mov_b32 s{sCNT}, 0
    s_mov_b64 exec, {(1 << nlanes) - 1}
    {l}:
    v_mov_b32 v{vt}, 0
    v_mov_b32 v{vt+1}, 0
    buffer_atomic_or_x2 {vr(vt,2)}, v{VFL}, s[{WS}:{WS+3}], s{soff} offen sc0 sc1
    s_add_u32 s{sCNT}, s{sCNT}, 1
    v_cmp_ne_u64 vcc, s[{sNON}:{sNON+1}], {vr(vt,2)}
    s_cbranch_vccz {d}
    s_cmp_lt_u32 s{sCNT}, {SPIN}
    s_cbranch_scc1 {l}
    {d}:
    s_mov_b64 exec, -1
    """)


def warm_code(a):
    if OPT["pads"]:
        a.raw(f"""
        s_mov_b64 exec, 0
        s_cmp_eq_u32 s{sw}, 1
        s_cbranch_scc1 L_pad_1
        s_cmp_eq_u32 s{sw}, 2
        s_cbranch_scc1 L_pad_2
        s_cmp_eq_u32 s{sw}, 3
        s_cbranch_scc1 L_pad_3
        s_branch L_pad_0
        L_pad_ret:
        s_mov_b64 exec, -1
        """)


def prologue(a, st):
    st.mark(a, "start")
    a("s_cmp_ge_u32 s2, 256")
    a("s_cbranch_scc1 L_end")
    names = [("x", X), ("wqkv", WQ), ("ws", WS), ("wo", WO), ("w1", W1), ("w2", W2), ("b1", B1), ("b2", B2), ("out", OUT)]
    for n, r in names:
        a(f"s_load_dwordx2 s[{r}:{r+1}], s[0:1], {ARG[n]}")
    code_prefetch(a, "L_pf_base", "L_code_end-L_pf_base-4", 250, 62 - 2, lines_per_wave=4)
    a("L_pf_base:")
    for n, r in names[:3]:
        a(f"s_mov_b32 s{r+2}, {NBYTES[n]}")
        a(f"s_mov_b32 s{r+3}, 0x00020000")
    a(f"""
    v_lshrrev_b32 v2, 6, v0
    v_and_b32 v1, 63, v0
    v_readfirstlane_b32 s{sw}, v2
    s_and_b32 s{sxcd}, s2, 7
    s_lshr_b32 s{sloc}, s2, 3
    """)
    return names[3:]


def stage1(a, st, late_srds):
    stb, scg, stt, shp, sXo, sWo, sMx, sMw, sMSK, sST = sA[:10]
    a(f"""
    s_lshr_b32 s{stb}, s{sxcd}, 1
    s_lshl_b32 s{stb}, s{stb}, 3
    s_and_b32 s{scg}, s{sloc}, 7
    s_add_u32 s{stb}, s{stb}, s{scg}
    s_and_b32 s{sT}, s{sxcd}, 1
    s_lshr_b32 s{sT2}, s{sloc}, 3
    s_lshl2_add_u32 s{scg}, s{sT}, s{sT2}
    s_lshl1_add_u32 s{sT}, s{sT2}, s{sT}
    s_add_u32 s{sT}, s{sT}, s{stb}
    s_and_b32 s{sT}, s{sT}, 7
    s_lshl_b32 s{sXo}, s{sT}, 7
    s_lshl_b32 s{sMx}, s{sw}, 11
    s_mul_i32 s{sMw}, s{sw}, 6144
    s_add_u32 s{sMw}, s{sMw}, 8192
    s_lshl_b32 s{sT}, s{stb}, 16
    s_lshl_b32 s{sT2}, s{sw}, 14
    s_add_u32 s{sT}, s{sT}, s{sT2}
    v_lshrrev_b32 v4, 3, v1
    v_lshl_add_u32 v4, v4, 10, s{sT}
    v_lshrrev_b32 v5, 4, v1
    v_and_b32 v6, 7, v1
    v_xor_b32 v5, v5, v6
    v_lshl_add_u32 v2, v5, 4, v4
    v_xor_b32 v5, 4, v5
    v_lshl_add_u32 v3, v5, 4, v4
    v_add_u32 v3, {8192 - 1024}, v3
    s_mul_i32 s{sT}, s{sw}, {16 * 3072}
    s_lshl_b32 s{sT2}, s{scg}, 7
    s_add_u32 s{sT}, s{sT}, s{sT2}
    v_bfe_u32 v6, v1, 2, 3
    v_mul_u32_u24 v6, 3072, v6
    v_lshrrev_b32 v7, 5, v1
    v_lshl_add_u32 v6, v7, 6, v6
    v_and_b32 v7, 3, v1
    v_lshl_add_u32 v6, v7, 4, v6
    v_add_u32 v4, s{sT}, v6
    v_add_u32 v5, {8 * 3072}, v4
    """)

    def dma(c):
        slot = (c & 3) * 32768
        t = f"c{c}"
        ld = lambda v, srd, so, off: (f"buffer_load_dwordx4 v{v}, s[{srd}:{srd+3}], s{so} offen offset:{off} lds", t)
        return [
            ([f"s_add_u32 m0, s{sMx}, {slot}", f"s_mul_i32 s{sWo}, s{sXo}, 1536"], [ld(2, X, sXo, 0), ld(3, X, sXo, 1024)]),
            ([f"s_add_u32 m0, s{sMw}, {slot}", f"s_add_u32 s{sXo}, s{sXo}, 128"], [ld(4, WQ, sWo, 0), ld(4, WQ, sWo, 1024), ld(4, WQ, sWo, 2048)]),
            ([f"s_add_u32 m0, s{sMw}, {slot + 3072}", f"s_and_b32 s{sXo}, s{sXo}, 1023"], [ld(5, WQ, sWo, 0), ld(5, WQ, sWo, 1024)]),
            ([], [ld(5, WQ, sWo, 2048)]),
        ]

    def dma_all(c):
        for sc, lds in dma(c):
            for t in sc:
                a(t)
            for t, g in lds:
                a(t, tag=g)

    dma_all(0)
    a(f"s_add_u32 s62, s{WS}, {WS_NONCE}")
    a(f"s_addc_u32 s63, s{WS+1}, 0")
    a(f"s_load_dwordx2 s[{sNON}:{sNON+1}], s[62:63], 0")
    dma_all(1)
    for n, r in late_srds:
        a(f"s_mov_b32 s{r+2}, {NBYTES[n]}")
        a(f"s_mov_b32 s{r+3}, 0x00020000")
    XA, WA = 6, 14
    a(f"""
    s_and_b32 s{stt}, s{sw}, 1
    s_lshr_b32 s{shp}, s{sw}, 1
    s_xor_b32 s{sT3}, s{stt}, s{shp}
    s_lshl_b32 s{sT}, s{stt}, 12
    s_lshl_b32 s{sT2}, s{sT3}, 5
    v_and_b32 v20, 31, v1
    v_lshrrev_b32 v21, 5, v1
    v_bfe_u32 v22, v1, 1, 3
    v_xor_b32 v22, v22, v21
    v_lshlrev_b32 v22, 4, v22
    v_xor_b32 v22, s{sT2}, v22
    v_lshl_add_u32 v22, v20, 7, v22
    v_add_u32 v{XA}, s{sT}, v22
    v_xor_b32 v{XA+1}, 32, v{XA}
    v_xor_b32 v{XA+2}, 64, v{XA}
    v_xor_b32 v{XA+3}, 96, v{XA}
    v_add_u32 v{XA+4}, 0x10000, v{XA}
    v_add_u32 v{XA+5}, 0x10000, v{XA+1}
    v_add_u32 v{XA+6}, 0x10000, v{XA+2}
    v_add_u32 v{XA+7}, 0x10000, v{XA+3}
    s_lshl_b32 s{sT}, s{shp}, 9
    s_add_u32 s{sT}, s{sT}, 8192
    s_mul_i32 s{sT2}, s{sT3}, 6144
    v_mul_u32_u24 v23, 3072, v21
    v_bfe_u32 v22, v1, 2, 2
    v_lshl_add_u32 v23, v22, 6, v23
    v_bfe_u32 v22, v1, 4, 1
    v_lshl_add_u32 v23, v22, 5, v23
    v_and_b32 v22, 3, v1
    v_lshl_add_u32 v23, v22, 3, v23
    v_add_u32 v23, s{sT}, v23
    v_add_u32 v{WA}, s{sT2}, v23
    v_subrev_u32 v{WA+1}, s{sT2}, v23
    v_add_u32 v{WA+2}, 0x10000, v{WA}
    v_add_u32 v{WA+3}, 0x10000, v{WA+1}
    """)
    SEL, IDX, SXX, S0, S1, TMP = 176, 180, 21, 104, 108, 112
    a(f"""
    v_bfe_u32 v22, v1, 3, 1
    v_xor_b32 v22, v22, v21
    v_and_b32 v23, 6, v1
    v_or_b32 v22, v22, v23
    v_cmp_eq_u32 vcc, 0, v22
    v_cmp_eq_u32 s[62:63], 4, v22
    v_mov_b32 v22, 0x3f803f80
    v_cndmask_b32 v{SEL}, 0, v22, vcc
    v_cndmask_b32 v{SEL+1}, 0, v22, vcc
    v_cndmask_b32 v{SEL+2}, 0, v22, s[62:63]
    v_cndmask_b32 v{SEL+3}, 0, v22, s[62:63]
    v_and_b32 v22, 1, v1
    v_mul_u32_u24 v22, 0xaaaa, v22
    v_add_u32 v{IDX}, 0x4444, v22
    v_mov_b32 v{SXX}, 0
    v_mov_b32 v{SXX+1}, 0
    s_mov_b32 s{sMSK}, 0xffff0000
    """)
    FR = [24, 40, 184]
    AQ, AK, AV = 56, 72, 88
    for r in range(8):
        a(f"v_mov_b32 v{S0+r}, 0")
    a(f"""
    s_lshl1_add_u32 s{sT}, s{scg}, s{shp}
    s_lshl1_add_u32 s{sT2}, s{stb}, s{stt}
    s_lshl_b32 s{sST}, s{sT}, 7
    s_add_u32 s{sST}, s{sST}, s{sT2}
    s_lshl_b32 s{sST}, s{sST}, 10
    s_add_u32 s{sNON}, s{sNON}, 0x9e3779b9
    s_add_u32 s{sNON+1}, s{sNON+1}, 0x7f4a7c15
    """)
    for c in range(2, OPT["p1_pre"]):
        dma_all(c)
    sched, n = {}, 0
    for c in range(OPT["p1_pre"], 8):
        n = max(n, 4 * (c - 3) - 2)
        fast = n > 4 * (c - 3) - 2 or c < 4
        for i, p in enumerate(dma(c)):
            sched.setdefault(n, []).append(p)
            if not fast or i % 2:
                n += 1
    a(f"""
    s_lshl_b32 s{sT}, s2, 10
    s_add_u32 s{sT}, s{sT}, {WS_ST}
    v_lshlrev_b32 v202, 2, v0
    v_mov_b32 v203, -1
    """)
    a(f"buffer_store_dword v203, v202, s[{WS}:{WS+3}], s{sT} offen sc1", tag="st1")
    a(f"v_mul_u32_u24 v{VREP}, {FREP}, v1")
    a(f"v_lshlrev_b32 v{VFL}, 3, v1")
    if OPT["ftouch"]:
        a(f"""
        s_lshl2_add_u32 s{sT}, s2, s{sw}
        s_lshl_b32 s{sT}, s{sT}, 7
        s_add_u32 s{sT}, s{sT}, {WS_FL}
        v_mov_b32 v204, 0
        s_mov_b64 exec, 1
        buffer_atomic_or v204, off, s[{WS}:{WS+3}], s{sT} sc1
        s_mov_b64 exec, -1
        """)
    if OPT["pads"] == "p1":
        warm_code(a)
    st.mark(a, "p1_issued")

    def reads(n):
        if n >= 32:
            return []
        c, j = n >> 2, n & 3
        slot = c & 3
        hi, so = slot >> 1, (slot & 1) * 32768
        b = FR[n % 3]
        r = [(f"ds_read_b128 {vr(b,4)}, v{XA + j + 4*hi} offset:{so}", f"r{n}")]
        for seg in range(3):
            for e in range(2):
                r.append((f"ds_read_b64_tr_b16 {vr(b + 4 + 4*seg + 2*e, 2)}, v{WA + (j & 1) + 2*hi} offset:{so + j*6144 + seg*1024 + e*256}", f"r{n}"))
        return r

    def step(n):
        b = FR[n % 3]
        xf = vr(b, 4)
        c = lambda acc: "0" if n == 0 else vr(acc, 16)
        m = n + 2
        rd = reads(m)
        if n % 2 == 0:
            va = []
            for i in range(4):
                va.append(f"v_lshlrev_b32 v{TMP+2*i}, 16, v{b+i}")
                va.append(f"v_and_b32 v{TMP+2*i+1}, s{sMSK}, v{b+i}")
        else:
            va = [f"v_fmac_f32 v{SXX + (i & 1)}, v{TMP+i}, v{TMP+i}" for i in range(8)]
        ps = sched.get(n, [])
        sc, ld = ps[-1] if ps else ([], [])
        def put(rs, vs):
            for t, g in rs:
                a(t, tag=g)
            for t in vs:
                a(t)
        last = (m & 3) == 3
        k1, k2 = (4, 7) if last else (3, 5)
        a(f"v_mfma_f32_32x32x16_bf16 {vr(AQ,16)}, {vr(b+4,4)}, {xf}, {c(AQ)}")
        if m < 32 and (m & 3) == 0:
            a.wait(f"c{m >> 2}", f"r{m-1}")
            a("s_barrier")
        if len(ps) == 2:
            put([], ps[0][0])
            put(rd[0:k1] + ps[0][1], va[0:2])
        else:
            put(rd[0:k1], va[0:2])
        a(f"v_mfma_f32_32x32x16_bf16 {vr(AK,16)}, {vr(b+8,4)}, {xf}, {c(AK)}")
        put([], sc[:1])
        put(rd[k1:k2], va[2:5] + sc[1:])
        a(f"v_mfma_f32_32x32x16_bf16 {vr(AV,16)}, {xf}, {vr(b+12,4)}, {c(AV)}")
        if n % 2 == 1:
            a.wait(f"r{n+1}")
        put(rd[k2:7] + ld, va[5:8])
        if n % 2 == 0:
            a(f"v_smfmac_f32_16x16x64_bf16 {vr(S0,4)}, {vr(SEL,4)}, {vr(b,8)}, v{IDX}")
            a(f"v_smfmac_f32_16x16x64_bf16 {vr(S1,4)}, {vr(SEL,4)}, {vr(b+8,8)}, v{IDX}")
            a.wait(f"r{n+1}")

    a.wait("c0")
    a("s_barrier")
    st.mark(a, "p1_c0")
    for t, g in reads(0) + reads(1):
        a(t, tag=g)
    for n in range(32):
        step(n)
    st.mark(a, "p1_loop")

    MU, RS, RQ = 22, 18, 24
    a(f"""
    s_lshl_b32 s{sT}, s{sw}, 11
    s_add_u32 s{sT}, s{sT}, {L_T}
    v_add_f32 v{SXX}, v{SXX}, v{SXX+1}
    v_lshl_add_u32 v3, v1, 2, s{sT}
    v_add_f32 v{S0}, v{S0}, v{S0+1}
    v_add_f32 v{S1}, v{S1}, v{S1+1}
    """)
    a(f"ds_write_b32 v3, v{S0} offset:1024", tag="ex")
    a(f"ds_write_b32 v3, v{S1} offset:1280", tag="ex")
    a(f"ds_write_b32 v3, v{SXX} offset:1536", tag="ex")
    a(f"""
    v_xor_b32 v5, 2048, v3
    v_xor_b32 v6, 4096, v3
    v_cmp_gt_u32 vcc, 32, v1
    v_and_b32 v2, 31, v1
    v_cndmask_b32 v7, v5, v6, vcc
    v_lshl_add_u32 v2, v2, 2, s{sT}
    v_lshrrev_b32 v4, 5, v1
    v_lshl_add_u32 v4, v4, 4, s{sT}
    """)
    a.wait("ex")
    a("s_barrier")
    a(f"""
    ds_read_b32 v25, v7 offset:1024
    ds_read_b32 v26, v5 offset:1280
    ds_read_b32 v27, v6 offset:1536
    v_add_f32 v{S0}, v{S0}, v25
    v_add_f32 v{S1}, v{S1}, v26
    ds_write_b32 v3, v{S0} offset:0
    ds_write_b32 v3, v{S1} offset:256
    v_add_f32 v{SXX}, v{SXX}, v27
    v_mov_b32 v26, v{S1}
    v_mov_b32 v25, v{SXX}
    """)
    B0, B1_, B2_, B3 = 112, 128, 144, 160
    for q in range(4):
        a(f"ds_read_b128 {vr(B0+4*q,4)}, v4 offset:{128 + 32*q}")
    for q in range(4):
        a(f"ds_read_b128 {vr(B1_+4*q,4)}, v4 offset:{256 + 32*q}")
    a(f"""
    v_permlane32_swap_b32 v25, v{SXX}
    v_permlane32_swap_b32 v26, v{S0}
    v_add_f32 v{SXX}, v{SXX}, v25
    v_mov_b32 v27, v26
    v_mov_b32 v28, v{S0}
    v_mul_f32 v{SXX}, {f32(1.0/D)}, v{SXX}
    v_permlane32_swap_b32 v27, v26
    v_permlane32_swap_b32 v28, v{S0}
    v_mul_f32 v{MU}, {f32(-1.0/D)}, v26
    v_mov_b32 v26, v28
    v_fma_f32 v{SXX}, -v{MU}, v{MU}, v{SXX}
    v_max_f32 v{SXX}, 0, v{SXX}
    v_add_f32 v{SXX}, {f32(EPS)}, v{SXX}
    v_rsq_f32 v{RS}, v{SXX}
    ds_write_b32 v2, v{MU} offset:512
    ds_write_b32 v2, v{RS} offset:640
    v_mul_f32 v{RQ}, {f32(0.25*LOG2E)}, v{RS}
    """)
    for q in range(4):
        a(f"ds_read_b128 {vr(B2_+4*q,4)}, v4 offset:{512 + 32*q}")
    for q in range(4):
        a(f"ds_read_b128 {vr(B3+4*q,4)}, v4 offset:{640 + 32*q}")
    a(f"""
    s_and_b32 s{sT3}, s{stb}, 3
    s_lshl2_add_u32 s{sT3}, s{scg}, s{sT3}
    s_lshl_b32 s{sT3}, s{sT3}, 7
    s_lshr_b32 s{sT}, s{stb}, 2
    s_lshl3_add_u32 s{sT3}, s{sT}, s{sT3}
    s_add_u32 s{sT3}, s{sT3}, {F1}
    s_mov_b32 s{sT}, s{sST}
    v_lshlrev_b32 v2, 4, v1
    v_and_b32 v6, 0x33, v1
    v_bfe_u32 v7, v1, 2, 1
    v_lshl_add_u32 v6, v7, 3, v6
    v_bfe_u32 v7, v1, 3, 1
    v_lshl_add_u32 v6, v7, 2, v6
    v_lshlrev_b32 v6, 4, v6
    v_and_b32 v7, 15, v1
    v_lshlrev_b32 v7, 4, v7
    v_lshrrev_b32 v8, 5, v1
    v_lshl_add_u32 v7, v8, 8, v7
    v_bfe_u32 v8, v1, 4, 1
    v_lshl_add_u32 v7, v8, 16, v7
    """)
    P = 28
    for (acc, bc, scale, base, addr) in ((AK, B1_, RS, WS_K, 6), (AQ, B0, RQ, WS_Q, 2)):
        for i in range(8):
            a(f"v_pk_fma_f32 {vr(acc+2*i,2)}, {vr(bc+2*i,2)}, {vr(MU,2)}, {vr(acc+2*i,2)} op_sel_hi:[1,0,1]")
        for i in range(8):
            a(f"v_pk_mul_f32 {vr(acc+2*i,2)}, {vr(acc+2*i,2)}, {vr(scale,2)} op_sel_hi:[1,0]")
        for i in range(8):
            a(f"v_cvt_pk_bf16_f32 v{P+i}, v{acc+2*i}, v{acc+2*i+1}")
        a(f"s_add_u32 s{sT2}, s{sT}, {base}")
        a(f"buffer_store_dwordx4 {vr(P,4)}, v{addr}, s[{WS}:{WS+3}], s{sT2} offen sc1", tag="st1")
        a(f"s_add_u32 s{sT2}, s{sT}, {base + 65536}")
        a(f"buffer_store_dwordx4 {vr(P+4,4)}, v{addr}, s[{WS}:{WS+3}], s{sT2} offen sc1", tag="st1")
        P += 8
    for i in range(8):
        a(f"v_pk_fma_f32 {vr(AV+2*i,2)}, {vr(B2_+2*i,2)}, v[26:27], {vr(AV+2*i,2)} op_sel_hi:[1,0,1]")
    for i in range(8):
        a(f"v_pk_mul_f32 {vr(AV+2*i,2)}, {vr(AV+2*i,2)}, {vr(B3+2*i,2)}")
    for i in range(8):
        a(f"v_cvt_pk_bf16_f32 v{P+i}, v{AV+2*i}, v{AV+2*i+1}")
    a(f"s_add_u32 s{sT2}, s{sT}, {WS_V}")
    a(f"buffer_store_dwordx4 {vr(P,4)}, v7, s[{WS}:{WS+3}], s{sT2} offen sc1", tag="st1")
    a(f"buffer_store_dwordx4 {vr(P+4,4)}, v7, s[{WS}:{WS+3}], s{sT2} offen offset:512 sc1", tag="st1")
    st.mark(a, "p1_stored")


def stage2(a, st, slow):
    shead, sqt, sSRC, sM0, sM1, sPASS, sStg, sWo, sMw, sP1, sP2, sQ = sA
    sW1, sW1b, sW1e = 93, 94, 95
    QF, IDX = [4, 8], 3
    AV = 12
    KR, VA, VB = [20, 24], [28, 32], [36, 40]
    OA = [44, 60]
    SB = [76, 92, 108, 124]
    WA, PA1, PA2, PD, FL = 140, 144, 145, 146, 148
    VWA, VWR, XA, VV = 190, 192, 194, 196
    CM = [156, 172]
    a(f"""
    s_lshl_b32 s{shead}, s{sxcd}, 2
    s_and_b32 s{sT}, s{sloc}, 3
    s_add_u32 s{shead}, s{shead}, s{sT}
    s_lshr_b32 s{sqt}, s{sloc}, 2
    s_lshl_b32 s{sqt}, s{sqt}, 2
    s_add_u32 s{sqt}, s{sqt}, s{sw}
    s_lshl_b32 s{sSRC}, s{shead}, 16
    s_lshl_b32 s{sQ}, s{sqt}, 11
    s_add_u32 s{sQ}, s{sQ}, s{sSRC}
    s_lshl_b32 s{sM0}, s{sw}, 11
    s_add_u32 s{sSRC}, s{sSRC}, s{sM0}
    s_add_u32 s{sSRC}, s{sSRC}, {WS_K}
    s_lshr_b32 s{sT}, s{sw}, 1
    s_lshl_b32 s{sT}, s{sT}, 5
    s_add_u32 s{sM1}, s{sM0}, s{sT}
    v_add_u32 v{VV}, {WS_V - WS_K}, v2
    v_and_b32 v20, 1, v1
    v_cmp_eq_u32 vcc, 0, v20
    v_mov_b32 v21, 0x3f803f80
    v_cndmask_b32 v24, 0, v21, vcc
    v_bfe_u32 v21, v1, 1, 2
    v_mul_u32_u24 v21, {VGRP}, v21
    v_lshl_add_u32 v21, v20, 4, v21
    v_mov_b32 v25, v24
    v_mov_b32 v26, v24
    v_mov_b32 v27, v24
    """)
    a(f"ds_write_b128 v21, v[24:27] offset:{L_KV_V + 4096}", tag="ones")
    a(f"""
    s_and_b32 s{sP1}, s{sloc}, 3
    s_lshl3_add_u32 s{sP1}, s{sP1}, s{sxcd}
    s_lshl2_add_u32 s{sP1}, s{sP1}, s{sw}
    s_lshl_b32 s{sP1}, s{sP1}, 7
    s_add_u32 s{sP1}, s{sP1}, {F1}
    v_and_b32 v20, 15, v1
    v_lshlrev_b32 v20, 4, v20
    v_lshrrev_b32 v21, 5, v1
    v_lshl_add_u32 v20, v21, 8, v20
    v_add_u32 v20, {L_KV_V}, v20
    v_and_b32 v21, 11, v1
    v_min_u32 v21, 1, v21
    v_lshlrev_b32 v21, 4, v21
    v_add_u32 v21, {L_KV_V + 4096}, v21
    v_and_b32 v22, 16, v1
    v_cmp_eq_u32 vcc, 0, v22
    v_mov_b32 v{IDX}, 0xdddd
    s_mov_b32 s{sPASS}, 0
    """)
    for i in range(8):
        a(f"v_cndmask_b32 v{AV+i}, v21, v20, vcc")
        if i < 7:
            a("v_add_u32 v20, 512, v20")
    for i in range(32):
        a(f"v_mov_b32 v{OA[0]+i}, 0")
    signal(a, sT3, ["st1"], 22, wg=True)
    st.mark(a, "p1_sig")
    if OPT["pads"] == "s1":
        warm_code(a)
    poll(a, sP1, FL, 8)
    st.mark(a, "p2_seen")

    def kv_jobs(s_):
        ld = lambda v, i: (f"buffer_load_dwordx4 v{v}, s[{WS}:{WS+3}], s{sSRC} offen offset:{i*1024} sc1 lds", f"kv{s_}")
        return [([f"s_add_u32 m0, s{sM0}, {L_KV_K + (s_ & 1) * 8192}"] + ([f"s_add_u32 s{sSRC}, s{sSRC}, 8192"] if s_ else []), [ld(2, 0), ld(2, 1)]),
                ([f"s_add_u32 m0, s{sM1}, {L_KV_V + (s_ & 1) * 2 * VGRP}"], [ld(VV, 0), ld(VV, 1)])]

    for s_ in range(2):
        for sc, lds in kv_jobs(s_):
            for x in sc:
                a(x)
            for x, g in lds:
                a(x, tag=g)
        if s_ == 0:
            a(f"buffer_load_dwordx4 {vr(QF[0],4)}, v2, s[{WS}:{WS+3}], s{sQ} offen sc1")
            a(f"buffer_load_dwordx4 {vr(QF[1],4)}, v2, s[{WS}:{WS+3}], s{sQ} offen offset:1024 sc1")
    a(f"""
    s_and_b32 s{sT}, s{sxcd}, 1
    s_and_b32 s{sT2}, s{sloc}, 3
    s_lshl2_add_u32 s{sDB}, s{sT}, s{sT2}
    s_lshr_b32 s{sT}, s{sloc}, 2
    s_lshl1_add_u32 s{sR5}, s{sT2}, s{sT}
    s_add_u32 s{sR4}, s{sR5}, s{sxcd}
    s_and_b32 s{sR4}, s{sR4}, 7
    s_sub_u32 s{sT2}, s{sR5}, 7
    s_cselect_b32 s{sR5}, s{sR5}, s{sT2}
    s_lshr_b32 s{sT2}, s{sxcd}, 1
    s_lshl3_add_u32 s{sSB}, s{sT2}, s{sT}
    s_mul_i32 s{sNB}, s{sT2}, 7
    s_min_u32 s{sT}, s{sT}, 6
    s_add_u32 s{sNB}, s{sNB}, s{sT}
    """)
    if not OPT["rot"]:
        a(f"s_mov_b32 s{sR4}, 0")
        a(f"s_mov_b32 s{sR5}, 0")
    a(f"""
    s_mul_i32 s{sW1b}, s{sw}, {512 * F * 2}
    s_lshl_b32 s{sT}, s{sNB}, 7
    s_add_u32 s{sW1b}, s{sW1b}, s{sT}
    s_add_u32 s{sW1e}, s{sW1b}, {512 * F * 2}
    s_mul_i32 s{sW1}, s{sR4}, {64 * F * 2}
    s_add_u32 s{sW1}, s{sW1}, s{sW1b}
    s_mul_i32 s{sStg}, s{sw}, 12288
    s_add_u32 s{sStg}, s{sStg}, {L_W1}
    """)
    wstream_addr(a, F * 2, VWA, VWR, 1024)
    a(f"v_add_u32 v{VWR}, s{sStg}, v{VWR}")
    a(f"""
    s_lshl_b32 s{sMw}, s{sw}, 12
    s_add_u32 s{sMw}, s{sMw}, {L_WO}
    s_lshl_b32 s{sWo}, s{sw}, 15
    s_and_b32 s{sT}, s{sloc}, 7
    s_lshl_b32 s{sT}, s{sT}, 7
    s_add_u32 s{sWo}, s{sWo}, s{sT}
    v_bfe_u32 v{WA}, v1, 2, 3
    v_lshlrev_b32 v{WA}, 10, v{WA}
    v_lshrrev_b32 v20, 5, v1
    v_lshl_add_u32 v{WA}, v20, 6, v{WA}
    v_and_b32 v20, 3, v1
    v_lshl_add_u32 v{WA}, v20, 4, v{WA}
    v_add_u32 v{WA+1}, 7168, v{WA}
    v_add_u32 v{WA+2}, {2*7168}, v{WA}
    v_add_u32 v{WA+3}, {3*7168}, v{WA}
    s_lshr_b32 s{sT2}, s{sloc}, 3
    s_lshl2_add_u32 s{sT2}, s{sxcd}, s{sT2}
    s_lshl2_add_u32 s{sT3}, s{sT2}, s{sw}
    s_lshl_b32 s{sT3}, s{sT3}, 14
    s_add_u32 s{sT3}, s{sT3}, s{sT}
    v_lshrrev_b32 v20, 3, v1
    v_lshl_add_u32 v20, v20, 10, s{sT3}
    v_lshrrev_b32 v21, 4, v1
    v_and_b32 v22, 7, v1
    v_xor_b32 v21, v21, v22
    v_lshl_add_u32 v{XA}, v21, 4, v20
    v_xor_b32 v21, 4, v21
    v_lshl_add_u32 v{XA+1}, v21, 4, v20
    v_add_u32 v{XA+1}, {8192 - 1024}, v{XA+1}
    """)
    a(f"""
    s_lshr_b32 s63, s{sw}, 1
    s_lshl1_add_u32 s{sT2}, s{sNB}, s63
    s_lshl_b32 s{sT2}, s{sT2}, 6
    v_lshrrev_b32 v20, 5, v1
    v_lshl_add_u32 v198, v20, 3, s{sT2}
    s_lshl1_add_u32 s{sT2}, s{sSB}, s63
    s_lshl_b32 s{sT2}, s{sT2}, 6
    v_and_b32 v20, 31, v1
    v_lshl_add_u32 v199, v20, 1, s{sT2}
    s_lshl2_add_u32 s{sP2}, s{sloc}, s{sw}
    s_mul_i32 s{sP2}, s{sP2}, {14 * S * 2}
    s_lshr_b32 s{sT}, s{sxcd}, 1
    s_lshl_b32 s{sT}, s{sT}, 10
    s_add_u32 s{sP2}, s{sP2}, s{sT}
    v_lshrrev_b32 v20, 5, v1
    v_bfe_u32 v21, v1, 2, 3
    v_lshlrev_b32 v{PA2}, 12, v20
    v_lshl_add_u32 v{PA2}, v21, 7, v{PA2}
    """)

    def rdK(t):
        a(f"ds_read_b128 {vr(KR[t&1],4)}, v2 offset:{L_KV_K + (t & 15)*1024}", tag="rd")

    def rdV(t, j):
        a(f"ds_read_b128 {vr((VA, VB)[j][t&1],4)}, v{AV + 2*(t&3) + j} offset:{((t >> 2) & 3) * VGRP}", tag="rd")

    def qk(u):
        a(f"v_mfma_f32_32x32x16_bf16 {vr(SB[u&3],16)}, {vr(KR[(u>>1)&1],4)}, {vr(QF[u&1],4)}, 0")

    def pv(u, j):
        a(f"v_smfmac_f32_32x32x32_bf16 {vr(OA[u&1],16)}, {vr((VA, VB)[j][(u>>1)&1],4)}, {vr(SB[u&3]+8*j,8)}, v{IDX}")

    pre, mem, dsr = {}, {}, {}
    def job(u, scal, loads):
        assert u not in mem, u
        pre[u] = scal
        mem[u] = loads
    for s_ in range(2, 8):
        u0 = 16 * (s_ - 2) + 14
        for i, (sc, lds) in enumerate(kv_jobs(s_)):
            job(u0 + i, sc, lds)
    for c in range(4):
        wl = lambda i: (f"buffer_load_dwordx4 v{WA+i}, s[{WO}:{WO+3}], s{sWo} offen offset:{i*1024} lds", "wo")
        job(32 + 16*c, [f"s_add_u32 m0, s{sMw}, {c * 16384}"] + ([f"s_add_u32 s{sWo}, s{sWo}, 131072"] if c else []), [wl(0), wl(1)])
        job(40 + 16*c, [f"s_add_u32 m0, s{sMw}, {c * 16384}"], [wl(2), wl(3)])
    job(24, [f"s_lshl_b32 s{sT}, s{sw}, 11", f"s_add_u32 m0, s{sT}, {L_X}"],
        [(f"buffer_load_dwordx4 v{XA}, s[{X}:{X+3}], 0 offen lds", "xt"), (f"buffer_load_dwordx4 v{XA+1}, s[{X}:{X+3}], 0 offen offset:1024 lds", "xt")])
    job(16, [], [(f"buffer_load_dwordx2 {vr(VB1 + 2*q, 2)}, v198, s[{B1}:{B1+3}], 0 offen offset:{16*q}", None) for q in range(2)])
    job(20, [], [(f"buffer_load_dwordx2 {vr(VB1 + 2*q, 2)}, v198, s[{B1}:{B1+3}], 0 offen offset:{16*q}", None) for q in range(2, 4)])
    job(28, [], [(f"buffer_load_ushort v{VB2}, v199, s[{B2}:{B2+3}], 0 offen", None)])
    for i in range(7):
        job(OPT["w2t0"] + 8*i, [f"s_add_u32 s{sP2}, s{sP2}, {2 * S * 2}"] if i else [], [(f"buffer_load_dword v{PD}, v{PA2}, s[{W2}:{W2+3}], s{sP2} offen", None)])
    u, units = OPT["w1_start"], []
    for k in range(32):
        while u in mem or (k % 4 == 0 and k and (u - 1) in mem):
            u += 1
        units.append(u)
        sc = [f"s_add_u32 m0, s{sStg}, {(k % 6) * 2048}"]
        if k % 4:
            sc.append(f"s_add_u32 s{sW1}, s{sW1}, {16 * F * 2}")
        elif k:
            job(u - 1, [f"s_add_u32 s{sW1}, s{sW1}, {16 * F * 2}", f"s_cmp_eq_u32 s{sW1}, s{sW1e}"], [])
            sc.insert(0, f"s_cselect_b32 s{sW1}, s{sW1b}, s{sW1}")
        job(u, sc, [(f"buffer_load_dwordx4 v{VWA}, s[{W1}:{W1+3}], s{sW1} offen lds", f"w1_{k}"),
                    (f"buffer_load_dwordx4 v{VWA+1}, s[{W1}:{W1+3}], s{sW1} offen offset:1024 lds", f"w1_{k}")])
        u = u + OPT["w1_step0"] if k < 5 else (OPT["w1_resume"] if k == 5 else u + OPT["w1_step"])
    assert units[-1] < 128, units
    def w1_read(k, i):
        nt, e = i >> 1, i & 1
        return f"ds_read_b64_tr_b16 {ar(8*k + 4*nt + 2*e, 2)}, v{VWR} offset:{(k % 6) * 2048 + nt*512 + e*256}"
    late = []
    for k in range(32):
        u = (units[k + 6] if k + 6 < 32 else units[31] + OPT["w1_step"] * (k + 6 - 31)) - 2
        if u + 1 < 128:
            dsr.setdefault(u, []).append((k, (0, 1)))
            dsr.setdefault(u + 1, []).append((k, (2, 3)))
            assert k + 6 >= 32 or units[k + 6] > u + 1, (k, u)
        else:
            late.append(k)

    a.wait("kv0", "ones")
    a("s_barrier")
    st.mark(a, "p2_go")
    rdK(0)
    rdV(0, 0)
    rdV(0, 1)
    qk(0)
    for u in range(128):
        t, q = u >> 1, u & 1
        s = SB[u & 3]
        if u in OPT["umarks"]:
            st.mark(a, f"u{u}")
        for i in range(16):
            a(f"v_exp_f32 v{s+i}, v{s+i}")
            if i == 0 and u < 127:
                qk(u + 1)
                if u % 16 == 14 and t < 63:
                    a.wait("rd", f"kv{(u >> 4) + 1}")
                    a("s_barrier")
                if q == 0:
                    a.wait("rd")
                if t < 63:
                    if q == 0:
                        rdK(t + 1)
                    else:
                        rdV(t + 1, 0)
            if i == 5:
                if u:
                    pv(u - 1, 1)
                for x in pre.get(u, ()):
                    a(x)
                if q == 1 and t < 63:
                    rdV(t + 1, 1)
            if i == 10:
                pv(u, 0)
                w = (["rd"] if q == 0 else []) + [f"w1_{k}" for k, _ in dsr.get(u, ())]
                if any(g and g.startswith("w1_") for _, g in mem.get(u, ())):
                    w.append("w1r")
                a.wait(*w)
                for x, g in mem.get(u, ()):
                    a(x, tag=g)
                for k, parts in dsr.get(u, ()):
                    for i2 in parts:
                        a(w1_read(k, i2), tag="w1r")
    pv(127, 1)
    st.mark(a, "p2_loop")
    def late_reads():
        for k in late:
            a.wait(f"w1_{k}")
            for i2 in range(4):
                a(w1_read(k, i2), tag="w1r")
    T = 20
    a(f"""
    L_attn_check:
    v_mov_b32 v{T+8}, {f32(2.0**-40)}
    v_mov_b32 v{T+9}, {f32(2.0**40)}
    v_mov_b32 v{T+10}, {f32(2.0**120)}
    s_lshl_b32 s{sT}, s{sqt}, 16
    s_lshl_b32 s{sT2}, s{shead}, 10
    s_add_u32 s{sT}, s{sT}, s{sT2}
    s_add_u32 s{sT}, s{sT}, {WS_O}
    s_add_u32 s{sT2}, s{sT}, 32768
    s_bfe_u32 s{sT3}, s{shead}, 0x20001
    s_lshl2_add_u32 s{sT3}, s{sqt}, s{sT3}
    s_lshl_b32 s{sT3}, s{sT3}, 7
    s_lshr_b32 s62, s{shead}, 3
    s_lshl4_add_u32 s{sT3}, s62, s{sT3}
    s_and_b32 s62, s{shead}, 1
    s_lshl3_add_u32 s{sT3}, s62, s{sT3}
    s_add_u32 s{sT3}, s{sT3}, {F2}
    s_mov_b64 s[62:63], 0
    """)
    for q in range(2):
        o = OA[q]
        a(f"""
        v_rcp_f32 v{T+2*q}, v{o+8}
        v_add_f32 v{T+4}, |v{o}|, |v{o+1}|
        v_add_f32 v{T+5}, |v{o+2}|, |v{o+3}|
        v_add_f32 v{T+6}, |v{o+4}|, |v{o+5}|
        v_add_f32 v{T+7}, |v{o+6}|, |v{o+7}|
        v_cmp_nge_f32 vcc, v{o+8}, v{T+8}
        v_add_f32 v{T+4}, v{T+4}, v{T+5}
        s_or_b64 s[62:63], s[62:63], vcc
        v_cmp_nle_f32 vcc, v{o+8}, v{T+9}
        v_add_f32 v{T+6}, v{T+6}, v{T+7}
        s_or_b64 s[62:63], s[62:63], vcc
        v_add_f32 v{T+4}, v{T+4}, v{T+6}
        v_cmp_nle_f32 vcc, v{T+4}, v{T+10}
        s_or_b64 s[62:63], s[62:63], vcc
        """)
    a(f"""
    s_cselect_b32 s{sP1}, 1, 0
    s_cmp_gt_u32 s{sP1}, s{sPASS}
    s_cbranch_scc1 L_attn_slow
    """)
    for q in range(2):
        o = OA[q]
        for i in range(4):
            a(f"v_pk_mul_f32 {vr(o+2*i,2)}, {vr(o+2*i,2)}, {vr(T+2*q,2)} op_sel_hi:[1,0]")
        for i in range(4):
            a(f"v_cvt_pk_bf16_f32 v{T+4+4*q+i}, v{o+2*i}, v{o+2*i+1}")
        a(f"buffer_store_dwordx4 {vr(T+4+4*q,4)}, v2, s[{WS}:{WS+3}], s{(sT, sT2)[q]} offen sc1", tag="st2")
    late_reads()

    b = slow
    b(f"""
    L_attn_slow:
    s_mov_b32 s{sPASS}, 1
    s_lshl_b32 s{sT}, s{shead}, 16
    s_add_u32 s{sT}, s{sT}, {WS_K}
    s_add_u32 s{sT2}, s{sT}, 65536
    v_mov_b32 v29, 0xff800000
    v_mov_b32 v30, 0xff800000
    L_attn_max:
    buffer_load_dwordx4 {vr(KR[0],4)}, v2, s[{WS}:{WS+3}], s{sT} offen sc1
    v_mfma_f32_32x32x16_bf16 {vr(SB[0],16)}, {vr(KR[0],4)}, {vr(QF[0],4)}, 0
    v_mfma_f32_32x32x16_bf16 {vr(SB[1],16)}, {vr(KR[0],4)}, {vr(QF[1],4)}, 0
    """)
    for q in range(2):
        for i in range(8):
            b(f"v_max3_f32 v{29+q}, v{SB[q]+2*i}, v{SB[q]+2*i+1}, v{29+q}")
    b(f"""
    s_add_u32 s{sT}, s{sT}, 1024
    s_cmp_lt_u32 s{sT}, s{sT2}
    s_cbranch_scc1 L_attn_max
    v_mov_b32 v31, v29
    v_mov_b32 v32, v30
    v_permlane32_swap_b32 v31, v29
    v_permlane32_swap_b32 v32, v30
    v_max_f32 v29, v29, v31
    v_max_f32 v30, v30, v32
    """)
    for q in range(2):
        for i in range(16):
            b(f"v_sub_f32 v{CM[q]+i}, 0, v{29+q}")
    for i in range(32):
        b(f"v_mov_b32 v{OA[0]+i}, 0")
    for i in range(4):
        b(f"v_mov_b32 v{VA[0]+i}, 0x3f803f80")
        b(f"v_mov_b32 v{VB[0]+i}, 0x3f803f80")
    b(f"""
    v_add_u32 v{AV}, {WS_V - WS_K - L_KV_V}, v{AV}
    s_sub_u32 s{sT}, s{sT}, 65536
    s_mov_b32 s62, 0xffff
    s_mov_b32 s63, 0xffff
    L_attn_redo:
    buffer_load_dwordx4 {vr(KR[0],4)}, v2, s[{WS}:{WS+3}], s{sT} offen sc1
    s_mov_b64 exec, s[62:63]
    buffer_load_dwordx4 {vr(VA[0],4)}, v{AV}, s[{WS}:{WS+3}], s{sT} offen sc1
    buffer_load_dwordx4 {vr(VB[0],4)}, v{AV}, s[{WS}:{WS+3}], s{sT} offen offset:512 sc1
    s_mov_b64 exec, -1
    """)
    for q in range(2):
        b(f"v_mfma_f32_32x32x16_bf16 {vr(SB[q],16)}, {vr(KR[0],4)}, {vr(QF[q],4)}, {vr(CM[q],16)}")
    for q in range(2):
        for r in range(16):
            b(f"v_exp_f32 v{SB[q]+r}, v{SB[q]+r}")
        b(f"v_smfmac_f32_32x32x32_bf16 {vr(OA[q],16)}, {vr(VA[0],4)}, {vr(SB[q],8)}, v{IDX}")
        b(f"v_smfmac_f32_32x32x32_bf16 {vr(OA[q],16)}, {vr(VB[0],4)}, {vr(SB[q]+8,8)}, v{IDX}")
    b(f"""
    s_add_u32 s{sT}, s{sT}, 1024
    s_cmp_lt_u32 s{sT}, s{sT2}
    s_cbranch_scc1 L_attn_redo
    s_branch L_attn_check
    """)


class W2Stream:
    SLOT = [2, 3, 4, 5, 6, 7, 8, 9, 10, 11, 12, 0, 1, 13]
    sOff, sBeg, sEnd, sStg = 93, 94, 95, 92

    def __init__(self, a):
        self.a = a

    def setup(self):
        a = self.a
        a(f"""
        s_mul_i32 s{self.sBeg}, s{sw}, {448 * S * 2}
        s_lshl_b32 s{sT}, s{sSB}, 7
        s_add_u32 s{self.sBeg}, s{self.sBeg}, s{sT}
        s_add_u32 s{self.sEnd}, s{self.sBeg}, {448 * S * 2}
        s_mul_i32 s{self.sOff}, s{sR5}, {64 * S * 2}
        s_add_u32 s{self.sOff}, s{self.sOff}, s{self.sBeg}
        s_lshl_b32 s{self.sStg}, s{sw}, 11
        s_add_u32 s{self.sStg}, s{self.sStg}, {L_W2}
        """)
        wstream_addr(a, S * 2, V2A, V2R, 256)
        a(f"v_add_u32 v{V2R}, s{self.sStg}, v{V2R}")
        a(f"v_add_u32 v{V2R+1}, {7 * 8192}, v{V2R}")

    def dma(self, k):
        a = self.a
        if k:
            a(f"s_add_u32 s{self.sOff}, s{self.sOff}, {16 * S * 2}")
            if k % 4 == 0:
                a(f"s_cmp_eq_u32 s{self.sOff}, s{self.sEnd}")
                a(f"s_cselect_b32 s{self.sOff}, s{self.sBeg}, s{self.sOff}")
        a(f"s_add_u32 m0, s{self.sStg}, {self.SLOT[k % 14] * 8192}")
        a(f"buffer_load_dwordx4 v{V2A}, s[{W2}:{W2+3}], s{self.sOff} offen lds", tag=f"w2_{k}")
        a(f"buffer_load_dwordx4 v{V2A+1}, s[{W2}:{W2+3}], s{self.sOff} offen offset:1024 lds", tag=f"w2_{k}")

    def read(self, k, parts=(0, 1, 2, 3)):
        a = self.a
        a.wait(f"w2_{k}")
        j = self.SLOT[k % 14]
        for i in parts:
            nt, e = i >> 1, i & 1
            a(f"ds_read_b64_tr_b16 {ar(8*k + 4*nt + 2*e, 2)}, v{V2R + j // 7} offset:{(j % 7) * 8192 + nt*512 + e*1024}", tag="w2r")


def wstream_addr(a, row, va, vrd, hs):
    a(f"""
    v_bfe_u32 v{va}, v1, 2, 3
    v_mul_u32_u24 v{va}, {row}, v{va}
    v_lshrrev_b32 v{vrd}, 5, v1
    v_lshrrev_b32 v{va+1}, 7, v0
    v_xor_b32 v{va+1}, v{va+1}, v{vrd}
    v_lshl_add_u32 v{va}, v{va+1}, 6, v{va}
    v_and_b32 v{va+1}, 3, v1
    v_lshl_add_u32 v{va}, v{va+1}, 4, v{va}
    v_mul_u32_u24 v{vrd}, {hs}, v{vrd}
    v_lshl_add_u32 v{vrd}, v{va+1}, 3, v{vrd}
    v_bfe_u32 v{va+1}, v1, 2, 2
    v_lshl_add_u32 v{vrd}, v{va+1}, 6, v{vrd}
    v_bfe_u32 v{va+1}, v1, 4, 1
    v_lshl_add_u32 v{vrd}, v{va+1}, 5, v{vrd}
    v_add_u32 v{va+1}, {8 * row - 1024}, v{va}
    """)


def stage3(a, st):
    stb, sdb, stt, sdt, sO, sMo, sST, sDT, sF5, sZ = sA[:10]
    WF = 112
    a(f"""
    s_lshr_b32 s{sT}, s{sloc}, 3
    s_lshl2_add_u32 s{stb}, s{sxcd}, s{sT}
    s_and_b32 s{sdb}, s{sloc}, 7
    s_and_b32 s{stt}, s{sw}, 1
    s_lshr_b32 s{sdt}, s{sw}, 1
    """)
    a(f"""
    s_lshl_b32 s{sT}, s{stt}, 11
    v_add_u32 v3, s{sT}, v2
    s_lshl_b32 s{sT}, s{sdt}, 9
    s_add_u32 s{sT}, s{sT}, {L_WO}
    v_lshrrev_b32 v7, 5, v1
    v_lshlrev_b32 v4, 8, v7
    v_bfe_u32 v8, v1, 2, 2
    v_lshl_add_u32 v4, v8, 6, v4
    v_bfe_u32 v8, v1, 4, 1
    v_lshlrev_b32 v9, 5, v8
    v_and_b32 v8, 1, v1
    v_lshl_add_u32 v9, v8, 4, v9
    v_bfe_u32 v8, v1, 1, 1
    v_lshl_add_u32 v9, v8, 3, v9
    v_add3_u32 v4, v4, v9, s{sT}
    """)
    a(f"""
    s_lshl_b32 s{sMo}, s{sw}, 12
    s_lshl_b32 s{sO}, s{stb}, 16
    s_lshl_b32 s{sT}, s{sw}, 11
    s_add_u32 s{sO}, s{sO}, s{sT}
    s_add_u32 s{sO}, s{sO}, {WS_O}
    v_add_u32 v5, {32768 - 2048}, v2
    v_and_b32 v10, 31, v1
    s_lshl2_add_u32 s{sST}, s{stb}, s{sw}
    s_lshl_b32 s{sST}, s{sST}, 7
    s_add_u32 s{sST}, s{sST}, {F2}
    """)
    a.wait("w1r", "rd")
    a("s_barrier")
    def wo_read(n):
        a(f"ds_read_b64_tr_b16 {vr(WF + 4*n, 2)}, v4 offset:{n*2048}", tag="wor")
        a(f"ds_read_b64_tr_b16 {vr(WF + 4*n + 2, 2)}, v4 offset:{n*2048 + 1024}", tag="wor")
    n0 = OPT["sig2_at"]
    for n in range(n0):
        wo_read(n)
    signal(a, sT3, ["st2"], 22, copies=1)
    st.mark(a, "p2_sig")
    poll(a, sST, 12, 8)
    if OPT["pbar3"]:
        a("s_barrier")
    st.mark(a, "p3_seen")
    rest = list(range(n0, 32))
    for c in range(4):
        a(f"s_add_u32 m0, s{sMo}, {L_O + c * 16384}")
        if c:
            a(f"s_add_u32 s{sO}, s{sO}, 8192")
        for i in range(4):
            a(f"buffer_load_dwordx4 v{(2, 5)[i >> 1]}, s[{WS}:{WS+3}], s{sO} offen offset:{i*1024} sc1 lds", tag=f"o{c}")
    for n in rest:
        wo_read(n)
    a(f"""
    s_lshl_b32 s{sT}, s{stt}, 12
    s_add_u32 s{sT}, s{sT}, {L_X}
    s_lshl_b32 s{sT2}, s{sdt}, 6
    v_bfe_u32 v8, v1, 1, 3
    v_xor_b32 v8, v8, v7
    v_lshlrev_b32 v8, 4, v8
    v_xor_b32 v8, s{sT2}, v8
    v_lshl_add_u32 v8, v10, 7, v8
    v_add_u32 v5, s{sT}, v8
    v_xor_b32 v6, 32, v5
    """)
    XF = 64
    a(f"ds_read_b128 {vr(XF,4)}, v5", tag="wor")
    a(f"ds_read_b128 {vr(XF+4,4)}, v6", tag="wor")
    w2 = W2Stream(a)
    n2a, n2b = OPT["w2a"], OPT["w2a"] + OPT["w2b"]
    T = 80
    for i in range(8):
        a(f"v_lshlrev_b32 v{T+2*i}, 16, v{XF+i}")
        a(f"v_and_b32 v{T+2*i+1}, 0xffff0000, v{XF+i}")
    w2.setup()
    a(f"""
    s_lshl1_add_u32 s{sST}, s{stb}, s{stt}
    s_lshl1_add_u32 s{sDT}, s{sdb}, s{sdt}
    s_lshl_b32 s{sT}, s{sST}, 12
    s_add_u32 s{sT}, s{sT}, {WS_ST}
    s_lshl_b32 s{sT2}, s{sDT}, 8
    s_add_u32 s{sT2}, s{sT2}, s{sT}
    v_lshlrev_b32 v11, 3, v10
    s_and_b32 s{sF5}, s{sST}, 32
    s_add_u32 s{sF5}, s{sF5}, s{sST}
    s_lshl_b32 s{sF5}, s{sF5}, 7
    s_add_u32 s{sF5}, s{sF5}, {F5}
    s_lshl3_add_u32 s{sT3}, s{sDT}, s{sF5}
    s_and_b32 s{sZ}, s{sdb}, 1
    s_mul_i32 s{sZ}, s{sZ}, {FREP}
    s_add_u32 s{sF5}, s{sF5}, s{sZ}
    """)
    FR, NB = 16, 4
    ACC = 48
    LAG = 3
    for n in range(32 + LAG):
        if n < 32:
            if n % 8 == 0:
                a.wait(f"o{n//8}", "wor")
                a("s_barrier")
            a(f"ds_read_b128 {vr(FR + 4*(n % NB),4)}, v3 offset:{L_O + (n >> 1)*4096 + (n & 1)*1024}", tag="or")
        if n >= LAG:
            m = n - LAG
            a(f"v_mfma_f32_32x32x16_bf16 {vr(ACC,16)}, {vr(WF + 4*m,4)}, {vr(FR + 4*(m % NB),4)}, {vr(T,16) if m == 0 else vr(ACC,16)}")
            if OPT["w2a_at"] <= m < OPT["w2a_at"] + 2 * n2a and (m - OPT["w2a_at"]) % 2 == 0:
                w2.dma((m - OPT["w2a_at"]) // 2)
    st.mark(a, "p3_loop")
    HP, T = 72, 16
    a(f"""
    v_pk_add_f32 {vr(T,2)}, {vr(ACC,2)}, {vr(ACC+2,2)}
    v_pk_add_f32 {vr(T+2,2)}, {vr(ACC+4,2)}, {vr(ACC+6,2)}
    v_pk_add_f32 {vr(T+4,2)}, {vr(ACC+8,2)}, {vr(ACC+10,2)}
    v_pk_add_f32 {vr(T+6,2)}, {vr(ACC+12,2)}, {vr(ACC+14,2)}
    v_pk_add_f32 {vr(T,2)}, {vr(T,2)}, {vr(T+2,2)}
    v_pk_add_f32 {vr(T+4,2)}, {vr(T+4,2)}, {vr(T+6,2)}
    v_pk_add_f32 {vr(T,2)}, {vr(T,2)}, {vr(T+4,2)}
    v_add_f32 v{T}, v{T}, v{T+1}
    v_mov_b32 v{T+1}, v{T}
    v_permlane32_swap_b32 v{T+1}, v{T}
    v_add_f32 v{T}, v{T}, v{T+1}
    v_mul_f32 v{T}, {f32(1.0/32)}, v{T}
    """)
    for i in range(8):
        a(f"v_pk_add_f32 {vr(T+2+2*i,2)}, {vr(ACC+2*i,2)}, {vr(T,2)} op_sel_hi:[1,0] neg_lo:[0,1] neg_hi:[0,1]")
    a(f"v_pk_mul_f32 {vr(T+18,2)}, {vr(T+2,2)}, {vr(T+2,2)}")
    a(f"v_pk_mul_f32 {vr(T+20,2)}, {vr(T+4,2)}, {vr(T+4,2)}")
    for i in range(2, 8):
        r = T + 18 + 2 * (i & 1)
        a(f"v_pk_fma_f32 {vr(r,2)}, {vr(T+2+2*i,2)}, {vr(T+2+2*i,2)}, {vr(r,2)}")
    a(f"""
    v_pk_add_f32 {vr(T+18,2)}, {vr(T+18,2)}, {vr(T+20,2)}
    v_add_f32 v{T+1}, v{T+18}, v{T+19}
    v_mov_b32 v{T+2}, v{T+1}
    v_permlane32_swap_b32 v{T+2}, v{T+1}
    v_add_f32 v{T+1}, v{T+1}, v{T+2}
    buffer_store_dwordx2 {vr(T,2)}, v11, s[{WS}:{WS+3}], s{sT2} offen sc1
    """)
    if OPT["stflag"]:
        signal(a, sT3, [], 40, copies=2)
    for i in range(8):
        a(f"v_cvt_pk_bf16_f32 v{HP+i}, v{ACC+2*i}, v{ACC+2*i+1}")
    a(f"""
    s_lshl4_add_u32 s{sO}, s{sST}, s{sDT}
    s_lshl_b32 s{sO}, s{sO}, 11
    s_add_u32 s{sO}, s{sO}, {WS_H}
    """)
    a(f"buffer_store_dwordx4 {vr(HP,4)}, v2, s[{WS}:{WS+3}], s{sO} offen sc1", tag="st3")
    a(f"buffer_store_dwordx4 {vr(HP+4,4)}, v2, s[{WS}:{WS+3}], s{sO} offen offset:1024 sc1", tag="st3")
    a("s_barrier")
    for k in range(n2a, n2b):
        w2.dma(k)
    a(f"""
    s_lshl_b32 s{sZ}, s{sw}, 11
    v_lshlrev_b32 v12, 6, v10
    v_lshl_add_u32 v12, v7, 4, v12
    v_add_u32 v12, s{sZ}, v12
    v_lshlrev_b32 v13, 9, v7
    v_bfe_u32 v8, v1, 2, 2
    v_lshl_add_u32 v13, v8, 6, v13
    v_add3_u32 v13, v13, v9, s{sZ}
    s_lshl_b32 s{sZ}, s{sDT}, 6
    s_add_u32 s{sZ}, s{sZ}, s{sST}
    s_lshl_b32 s{sZ}, s{sZ}, 11
    s_add_u32 s{sZ}, s{sZ}, {WS_Z}
    s_lshr_b32 s{sT3}, s{stb}, 3
    s_lshl2_add_u32 s{sT3}, s{sdb}, s{sT3}
    s_lshl_b32 s{sT3}, s{sT3}, 7
    s_and_b32 s{sT2}, s{stb}, 7
    s_lshl3_add_u32 s{sT3}, s{sT2}, s{sT3}
    s_add_u32 s{sT3}, s{sT3}, {F3}
    """)
    if OPT["stflag"]:
        poll(a, sF5, 40, 16)
    st.mark(a, "p3_stf")
    P = 16
    a(f"""
    s_mov_b32 s{sCNT}, 0
    L_st_poll:
    """)
    for p in range(8):
        a(f"buffer_load_dwordx2 {vr(P+2*p,2)}, v{VFL}, s[{WS}:{WS+3}], s{sT} offen offset:{p*512} sc1")
    a(f"""
    v_max3_u32 v32, v{P}, v{P+1}, v{P+2}
    v_max3_u32 v33, v{P+3}, v{P+4}, v{P+5}
    v_max3_u32 v32, v{P+6}, v{P+7}, v32
    v_max3_u32 v33, v{P+8}, v{P+9}, v33
    v_max3_u32 v32, v{P+10}, v{P+11}, v32
    v_max3_u32 v33, v{P+12}, v{P+13}, v33
    v_max3_u32 v32, v{P+14}, v{P+15}, v32
    v_max_u32 v32, v32, v33
    v_cmp_eq_u32 vcc, -1, v32
    s_add_u32 s{sCNT}, s{sCNT}, 1
    s_cbranch_vccz L_st_got
    s_cmp_lt_u32 s{sCNT}, {SPIN}
    s_cbranch_scc1 L_st_poll
    L_st_got:
    """)
    st.mark(a, "p3_stats")
    a(f"""
    v_pk_add_f32 {vr(32,2)}, {vr(P,2)}, {vr(P+2,2)}
    v_pk_add_f32 {vr(34,2)}, {vr(P+4,2)}, {vr(P+6,2)}
    v_pk_add_f32 {vr(36,2)}, {vr(P+8,2)}, {vr(P+10,2)}
    v_pk_add_f32 {vr(38,2)}, {vr(P+12,2)}, {vr(P+14,2)}
    v_pk_add_f32 {vr(32,2)}, {vr(32,2)}, {vr(34,2)}
    v_pk_add_f32 {vr(36,2)}, {vr(36,2)}, {vr(38,2)}
    v_pk_add_f32 {vr(32,2)}, {vr(32,2)}, {vr(36,2)}
    v_mov_b32 v34, v32
    v_permlane32_swap_b32 v34, v32
    v_add_f32 v32, v32, v34
    v_mul_f32 v32, {f32(1.0/16)}, v32
    """)
    for p in range(8):
        a(f"v_sub_f32 v{P+2*p}, v{P+2*p}, v32")
    a(f"v_mul_f32 v34, v{P}, v{P}")
    a(f"v_mul_f32 v35, v{P+2}, v{P+2}")
    for p in range(2, 8):
        a(f"v_fmac_f32 v{34 + (p & 1)}, v{P+2*p}, v{P+2*p}")
    a(f"""
    v_add_f32 v34, v34, v35
    v_fmac_f32 v33, {f32(32.0)}, v34
    v_mov_b32 v34, v33
    v_permlane32_swap_b32 v34, v33
    v_add_f32 v33, v33, v34
    v_mul_f32 v33, {f32(1.0/D)}, v33
    v_add_f32 v34, {f32(EPS)}, v33
    v_rcp_f32 v35, v34
    v_rsq_f32 v34, v34
    v_mul_f32 v35, v33, v35
    v_add_f32 v35, {f32(EPS)}, v35
    v_rsq_f32 v35, v35
    v_mul_f32 v34, v34, v35
    """)
    for i in range(8):
        a(f"v_pk_add_f32 {vr(ACC+2*i,2)}, {vr(ACC+2*i,2)}, {vr(32,2)} op_sel_hi:[1,0] neg_lo:[0,1] neg_hi:[0,1]")
    for i in range(8):
        a(f"v_pk_mul_f32 {vr(ACC+2*i,2)}, {vr(ACC+2*i,2)}, {vr(34,2)} op_sel_hi:[1,0]")
    for i in range(8):
        a(f"v_cvt_pk_bf16_f32 v{P+i}, v{ACC+2*i}, v{ACC+2*i+1}")
    a(f"""
    ds_write_b128 v12, {vr(P,4)} offset:{L_O}
    ds_write_b128 v12, {vr(P+4,4)} offset:{L_O + 32}
    ds_read_b64_tr_b16 {vr(P+8,2)}, v13 offset:{L_O}
    ds_read_b64_tr_b16 {vr(P+10,2)}, v13 offset:{L_O + 256}
    ds_read_b64_tr_b16 {vr(P+12,2)}, v13 offset:{L_O + 1024}
    ds_read_b64_tr_b16 {vr(P+14,2)}, v13 offset:{L_O + 1280}
    """)
    a(f"buffer_store_dwordx4 {vr(P+8,4)}, v2, s[{WS}:{WS+3}], s{sZ} offen sc1", tag="st3")
    a(f"buffer_store_dwordx4 {vr(P+12,4)}, v2, s[{WS}:{WS+3}], s{sZ} offen offset:1024 sc1", tag="st3")
    for k in range(n2b, 14):
        w2.dma(k)
    l = a.label("L_notag")
    a(f"""
    s_or_b32 s{sT}, s2, s{sw}
    s_cbranch_scc1 {l}
    s_mov_b32 s{sT}, {WS_NONCE}
    v_mov_b32 v34, s{sNON}
    v_mov_b32 v35, s{sNON+1}
    buffer_store_dwordx2 v[34:35], off, s[{WS}:{WS+3}], s{sT} sc1
    {l}:
    """)
    return w2


DEPTH = 12
AF = 96
ACC4 = 32
FIN, EP = 16, 200


def gemm_setup(a, base, astr, KS, srot, sOff, sBeg, sEnd):
    a(f"""
    s_mul_i32 s{sBeg}, s{sDB}, {2 * astr}
    s_mul_i32 s{sT}, s{sw}, {KS * 1024}
    s_add_u32 s{sBeg}, s{sBeg}, s{sT}
    s_add_u32 s{sBeg}, s{sBeg}, {base}
    s_add_u32 s{sEnd}, s{sBeg}, {KS * 1024}
    s_lshl_b32 s{sOff}, s{srot}, 12
    s_add_u32 s{sOff}, s{sOff}, s{sBeg}
    s_bitcmp1_b32 s{sw}, 0
    s_cselect_b32 s{sT}, {astr}, 0
    s_cselect_b32 s{sT2}, 0, {astr}
    v_add_u32 v3, s{sT}, v2
    v_add_u32 v4, s{sT2}, v2
    """)


def gemm_loop(a, which, KS, sOff, sBeg, sEnd, extra):
    DEPTH = OPT["depth"]
    def adv(k):
        if k and k % 4 == 0:
            a(f"s_add_u32 s{sOff}, s{sOff}, 4096")
            a(f"s_cmp_eq_u32 s{sOff}, s{sEnd}")
            a(f"s_cselect_b32 s{sOff}, s{sBeg}, s{sOff}")

    def ld(k, dt):
        a(f"buffer_load_dwordx4 {vr(AF + 8*(k % DEPTH) + 4*dt, 4)}, v{3 + dt}, s[{WS}:{WS+3}], s{sOff} offen offset:{(k % 4) * 1024} sc1")

    def pre():
        for k in range(DEPTH - 1):
            adv(k)
            ld(k, 0)
            ld(k, 1)

    def loop():
        for k in range(KS):
            s = AF + 8 * (k % DEPTH)
            kn = k + DEPTH - 1
            order = ((0, 0), (0, 1), (1, 0), (1, 1)) if k < KS - 1 else ((0, 1), (1, 0), (1, 1), (0, 0))
            for i, (dt, nt) in enumerate(order):
                j = 2*nt + dt
                acc = vr(ACC4 + 16 * j, 16)
                wf, af = ar(8*k + 4*nt, 4), vr(s + 4*dt, 4)
                A, B = (wf, af) if which == 1 else (af, wf)
                c = acc if k else (vr(FIN, 16) if (j == 0 and which == 1) else "0")
                a(f"v_mfma_f32_32x32x16_bf16 {acc}, {A}, {B}, {c}")
                if kn < KS:
                    if i == 0:
                        adv(kn)
                        ld(kn, 0)
                    if i == 2:
                        ld(kn, 1)
                extra(k, i)
    return pre, loop


def reduce_addr(a):
    for j in range(1, 4):
        a(f"s_xor_b32 s{sT}, s{sw}, {j}")
        a(f"s_mul_i32 s{sT}, s{sT}, 12288")
        a(f"v_add_u32 v{11 + j}, s{sT}, v2")
    a(f"s_mul_i32 s{sT}, s{sw}, 12288")
    a(f"v_add_u32 v15, s{sT}, v2")


def reduce4(a, between=None):
    for j in (2, 1, 3):
        for q in range(4):
            a(f"ds_write_b128 v{11 + j}, {vr(ACC4 + 16*j + 4*q, 4)} offset:{L_RED + (j - 1) * 4096 + q * 1024}", tag="red")
    if between:
        between()
    a.wait("red")
    a("s_barrier")
    for j in range(1, 4):
        for q in range(4):
            a(f"ds_read_b128 {vr(ACC4 + 16*j + 4*q, 4)}, v15 offset:{L_RED + (j - 1) * 4096 + q * 1024}")
    for j in range(1, 4):
        for i in range(8):
            a(f"v_pk_add_f32 {vr(ACC4 + 2*i, 2)}, {vr(ACC4 + 2*i, 2)}, {vr(ACC4 + 16*j + 2*i, 2)}")


def stage45(a, st, w2, slow):
    sAoff, sAb, sAe, sNT, sDT, sFL = sA[:6]
    gemm_setup(a, WS_Z, 131072, 32, sR4, sAoff, sAb, sAe)
    a(f"""
    s_lshr_b32 s{sT}, s{sw}, 1
    s_lshl1_add_u32 s{sNT}, s{sNB}, s{sT}
    s_and_b32 s{sT}, s{sw}, 1
    s_lshl1_add_u32 s{sDT}, s{sDB}, s{sT}
    s_lshr_b32 s{sFL}, s{sxcd}, 1
    s_lshl3_add_u32 s{sFL}, s{sFL}, s{sDB}
    s_lshl2_add_u32 s{sFL}, s{sFL}, s{sw}
    s_lshl_b32 s{sFL}, s{sFL}, 7
    s_add_u32 s{sFL}, s{sFL}, {F3}
    """)
    for i in range(8):
        a(f"v_lshlrev_b32 v{FIN + 2*i}, 16, v{VB1 + i}")
        a(f"v_and_b32 v{FIN + 2*i + 1}, 0xffff0000, v{VB1 + i}")
    reduce_addr(a)
    signal(a, sT3, ["st3"], 8, wg=True)
    st.mark(a, "p3_sig")
    a(f"s_lshr_b32 s{sT}, s{sloc}, 2")
    a(f"s_cmp_eq_u32 s{sT}, 7")
    a("s_cbranch_scc1 L_idle4")
    poll(a, sFL, 8, 8)
    if OPT["pbar"]:
        a("s_barrier")
    st.mark(a, "p4_seen")
    def extra4(k, i):
        if 1 <= k <= 14 and i in (1, 3):
            w2.read(k - 1, (i - 1, i))
        if (k, i) in use4:
            if use4.index((k, i)) == 0:
                a.wait("w2r")
            w2.dma(14 + use4.index((k, i)))
    t0 = 33 - OPT["depth"]
    use4 = sorted(([(kk, 0) for kk in range(t0, 32)] + [(kk, 2) for kk in range(31, t0 - 1, -1)])[:OPT["w2tail"]])
    pre, loop = gemm_loop(a, 1, 32, sAoff, sAb, sAe, extra4)
    pre()
    loop()
    st.mark(a, "p4_loop")
    T = 96
    c0 = -2.0 * 0.7978845608028654 * LOG2E
    def setup4():
        a(f"""
        v_mov_b32 v8, {f32(c0 * 0.044715)}
        v_mov_b32 v{FIN}, {f32(c0)}
        s_mul_i32 s{sT}, s{sDT}, 56
        s_add_u32 s{sT}, s{sT}, s{sNT}
        s_lshl_b32 s{sT}, s{sT}, 11
        s_add_u32 s{sT}, s{sT}, {WS_G}
        s_lshr_b32 s{sT3}, s{sxcd}, 1
        s_lshl2_add_u32 s{sT3}, s{sDB}, s{sT3}
        s_lshl_b32 s{sT3}, s{sT3}, 7
        s_lshr_b32 s{sT2}, s{sloc}, 2
        s_lshl3_add_u32 s{sT3}, s{sT2}, s{sT3}
        s_add_u32 s{sT3}, s{sT3}, {F4}
        """)
    reduce4(a, setup4)
    U = ACC4
    for h in range(2):
        R = range(4*h, 4*h + 4)
        for i in R:
            a(f"v_pk_mul_f32 {vr(T + 2*i, 2)}, {vr(U + 2*i, 2)}, {vr(U + 2*i, 2)}")
        for i in R:
            a(f"v_pk_fma_f32 {vr(T + 2*i, 2)}, {vr(T + 2*i, 2)}, v[8:9], {vr(FIN, 2)} op_sel_hi:[1,0,0]")
        for i in R:
            a(f"v_pk_mul_f32 {vr(T + 2*i, 2)}, {vr(T + 2*i, 2)}, {vr(U + 2*i, 2)}")
        for i in range(8*h, 8*h + 8):
            a(f"v_exp_f32 v{T+i}, v{T+i}")
        for i in R:
            a(f"v_pk_add_f32 {vr(T + 2*i, 2)}, {vr(T + 2*i, 2)}, 1.0 op_sel_hi:[1,0]")
        for i in range(8*h, 8*h + 8):
            a(f"v_rcp_f32 v{T+i}, v{T+i}")
        for i in R:
            a(f"v_pk_mul_f32 {vr(U + 2*i, 2)}, {vr(U + 2*i, 2)}, {vr(T + 2*i, 2)}")
        for i in R:
            a(f"v_cvt_pk_bf16_f32 v{T+16+i}, v{U + 2*i}, v{U + 2*i + 1}")
        a(f"buffer_store_dwordx4 {vr(T+16+4*h,4)}, v2, s[{WS}:{WS+3}], s{sT} offen offset:{1024*h} sc1", tag="st4")
    def setup5a():
        gemm_setup(a, WS_G, 114688, 28, sR5, sAoff, sAb, sAe)
        a(f"""
        s_lshr_b32 s{sT}, s{sw}, 1
        s_lshl1_add_u32 s{sNT}, s{sSB}, s{sT}
        s_add_u32 s{sFL}, s{sFL}, {F4 - F3}
        v_lshlrev_b32 v{VB2}, 16, v{VB2}
        s_lshl4_add_u32 s{sT}, s{sNT}, s{sDT}
        s_lshl_b32 s{sT}, s{sT}, 11
        s_add_u32 s{sT}, s{sT}, {WS_H}
        """)
    nt4 = 14 + len(use4)
    for k in range(nt4, min(28, nt4 + OPT["w2d"])):
        w2.dma(k)
    setup5a()
    for k in range(14, min(21, nt4)):
        w2.read(k)
    signal(a, sT3, ["st4"], 8, wg=True)
    st.mark(a, "p4_sig")
    for k in range(nt4 + OPT["w2d"], 28):
        w2.dma(k)
    main, a.ins = a.ins, slow.ins
    a("L_idle4:")
    for k in range(14):
        w2.read(k)
    a.wait("w2r")
    for k in range(14, 28):
        w2.dma(k)
    setup5a()
    for k in range(14, min(21, nt4)):
        w2.read(k)
    a("s_branch L_join5")
    a.ins = main
    a("L_join5:")
    poll(a, sFL, 8, 7)
    if OPT["pbar"]:
        a("s_barrier")
    st.mark(a, "p5_seen")
    def extra5(k, i):
        kk = min(21, nt4) + k
        if kk < 28 and i in (1, 3):
            w2.read(kk, (i - 1, i))
        if k == 29 - OPT['depth'] and i in (0, 2):
            a(f"buffer_load_dwordx4 {vr(EP + 2*i,4)}, v2, s[{WS}:{WS+3}], s{sT} offen offset:{512*i} sc1")
    pre, loop = gemm_loop(a, 2, 28, sAoff, sAb, sAe, extra5)
    pre()
    loop()
    st.mark(a, "p5_loop")
    def setup5():
        for i in range(8):
            a(f"v_lshlrev_b32 v{FIN + 2*i}, 16, v{EP + i}")
            a(f"v_and_b32 v{FIN + 2*i + 1}, 0xffff0000, v{EP + i}")
        for i in range(8):
            a(f"v_pk_add_f32 {vr(FIN + 2*i, 2)}, {vr(FIN + 2*i, 2)}, {vr(VB2, 2)} op_sel_hi:[1,0]")
        for i in range(8):
            a(f"v_pk_add_f32 {vr(ACC4 + 2*i, 2)}, {vr(ACC4 + 2*i, 2)}, {vr(FIN + 2*i, 2)}")
        a(f"""
        s_lshl_b32 s{sT}, s{sNT}, 15
        s_lshl_b32 s{sT2}, s{sDT}, 6
        s_add_u32 s{sT}, s{sT}, s{sT2}
        v_lshlrev_b32 v10, 10, v10
        v_lshl_add_u32 v10, v7, 4, v10
        """)
    reduce4(a, setup5)
    for i in range(8):
        a(f"v_cvt_pk_bf16_f32 v{T+i}, v{ACC4 + 2*i}, v{ACC4 + 2*i + 1}")
    a(f"""
    buffer_store_dwordx4 {vr(T,4)}, v10, s[{OUT}:{OUT+3}], s{sT} offen
    buffer_store_dwordx4 {vr(T+4,4)}, v10, s[{OUT}:{OUT+3}], s{sT} offen offset:32
    """)


def gen(stamp=False, diag=None):
    a, slow = Asm(), Asm()
    st = RT(stamp)
    late = prologue(a, st)
    stage1(a, st, late)
    stage2(a, st, slow)
    w1 = stage3(a, st)
    stage45(a, st, w1, slow)
    if stamp:
        a("s_waitcnt vmcnt(0)")
        st.mark(a, "end")
        if diag is None:
            st.flush(a)
        else:
            i = st.names.index(diag)
            a(f"""
            s_waitcnt lgkmcnt(0)
            s_add_u32 s{sT}, s{64 + 2*i}, 7000
            L_diag:
            s_memrealtime s[62:63]
            s_waitcnt lgkmcnt(0)
            s_sub_u32 s{sT2}, s62, s{sT}
            s_cmp_lt_i32 s{sT2}, 0
            s_cbranch_scc1 L_diag
            """)
    a("L_end:")
    a("s_endpgm")
    a.ins += slow.ins
    return a, st.names


def addresses(src):
    import subprocess, sys, re
    sys.path.insert(0, "cdna_kernels")
    import cdna_launch as cl
    open("_pad.s", "w").write(cl.with_harness_metadata(src, NAME + "_kernel", 11, launch_lists=True))
    r = subprocess.run(["clang", "-x", "assembler", "-target", "amdgcn-amd-amdhsa", "-mcpu=gfx950",
                        "_pad.s", "-o", "_pad.co"], capture_output=True, text=True)
    assert r.returncode == 0, r.stderr
    d = subprocess.run(["llvm-objdump", "-d", "--mcpu=gfx950", "_pad.co"], capture_output=True, text=True).stdout
    d = d[d.index(f"<{NAME}_kernel>:"):]
    return [int(m.group(1), 16) for m in re.finditer(r"// ([0-9A-F]{12}):", d)]


def add_pads(lines, build):
    isins = lambda l: l.startswith("    ") and not l.strip().endswith(":")
    dummy = "".join(f"L_pad_{i}:\n" for i in range(4))
    addr = addresses(build(lines, dummy))
    idx = [i for i, l in enumerate(lines) if isins(l)]
    stop = lines.index("L_end:")
    pos, shift, page = [], 0, addr[0] >> 12
    for n, i in enumerate(idx):
        if i > stop:
            break
        ad = addr[n] + shift
        if ad >> 12 != page:
            best = n
            for m in range(n, min(n + 12, len(idx))):
                if addr[m] + shift - (ad & ~0xfff) >= 60:
                    break
                if "mfma" in lines[idx[m - 1]] and lines[idx[m]].strip().startswith(("v_", "ds_", "buffer_")):
                    best = m
                    break
            pos.append(idx[best])
            shift += 4
            page = ad >> 12
    out = list(lines)
    for k in reversed(range(len(pos))):
        tgt = f"L_pad_{k + 4}" if k + 4 < len(pos) else "L_pad_ret"
        out[pos[k]:pos[k]] = [f"L_pad_{k}:", f"    s_cbranch_execz {tgt}"]
    return out


def text(stamp=False, diag=None):
    a, names = gen(stamp, diag)
    header = open(f"cdna_kernels/{NAME}.s.ref").read().split("; Override launch")[0]
    k = NAME + "_kernel"
    def build(lines, tail=""):
        s = header + f"; @launch grid=(256,1,1) block=(256,1,1) lds={LDS}\n"
        if stamp:
            s += "; stamps: " + " ".join(names) + "\n"
        s += f'.amdgcn_target "amdgcn-amd-amdhsa--gfx950"\n.text\n.globl {k}\n.p2align 12\n.p2align 8\n.type {k},@function\n{k}:\n'
        s += "\n".join(lines) + "\n" + tail
        s += 'L_code_end:\n.section .rodata,"a"\n'
        s += kernel_desc(k, a)
        return s
    lines = [l.strip() if l.strip().endswith(":") else l for l in a.finalize().split("\n")]
    if OPT["pads"]:
        lines = add_pads(lines, build)
    return build(lines)


if __name__ == "__main__":
    open("mega.s", "w").write(text(False))
    open("mega_st.s", "w").write(text(True))
    print("ok")
```

```python
import sys, mega
args = " ".join(sys.argv[1:]).split("--")
base = dict(mega.OPT)
for grp in args:
    t = grp.split()
    if not t: continue
    mega.OPT.clear(); mega.OPT.update(base)
    for kv in t[1:]:
        k, v = kv.split("=")
        try: v = eval(v)
        except Exception: pass
        mega.OPT[k] = v
    open(f"v_{t[0]}.s", "w").write(mega.text(True))
    open(f"f_{t[0]}.s", "w").write(mega.text(False))
```
